```python
import torch

def _softmax(x, axis=-1):
    return torch.softmax(x, dim=axis)
def _gelu(x):
    return torch.nn.functional.gelu(x, approximate="tanh")
def _silu(x):
    return torch.nn.functional.silu(x)
def _sigmoid(x):
    return torch.sigmoid(x)
def _layernorm(x, axis=-1, eps=1e-5):
    m = x.mean(dim=axis, keepdim=True)
    v = x.var(dim=axis, keepdim=True, unbiased=False)
    return (x - m) / torch.sqrt(v + eps)
def _scatter_add(tgt, idx, src, axis=0):
    return tgt.clone().index_add_(axis, idx, src)
def _segment_sum(src, seg, n):
    out = torch.zeros((n,) + src.shape[1:], dtype=src.dtype)
    return out.index_add_(0, seg, src)
def _pad(x, pw):
    flat = tuple(v for pair in reversed(pw) for v in pair)
    return torch.nn.functional.pad(x, flat)

kernel_name = 'standalone__mpnn_edge_mlp__graph'

def setup_inputs():

    _w = (lambda a: (lambda t: t.to(torch.bfloat16) if t.is_floating_point() else t)(torch.as_tensor(a)))
    N, deg, D, De = 12500, 64, 64, max(0, 1)
    E = N * deg
    return {
        "x": _w((lambda *s: torch.randn(*s, dtype=torch.bfloat16) * 0.05)(N, D)),
        "e_attr": _w((lambda *s: torch.randn(*s, dtype=torch.bfloat16) * 0.4)(E, De)),
        "src": _w((lambda lo, hi, *s: torch.randint(lo, hi, s))(0, N, E).to(torch.int64)),
        "dst": _w((lambda lo, hi, *s: torch.randint(lo, hi, s))(0, N, E).to(torch.int64)),
        "w_msg": _w((lambda *s: torch.randn(*s, dtype=torch.bfloat16) * 0.4)(2 * D + De, D)),
        "w_upd": _w((lambda *s: torch.randn(*s, dtype=torch.bfloat16) * 0.05)(2 * D, D)),
    }

def reference(x, e_attr, src, dst, w_msg, w_upd):
    N, D = x.shape
    m_in = torch.concatenate([x[src], x[dst], e_attr], axis=-1)
    msg = _silu(m_in @ w_msg)
    agg = _segment_sum(msg, dst, N)
    return _silu(torch.concatenate([x, agg], axis=-1) @ w_upd)
```

```python
import sys, struct

N = 12500
E = 800000
NPROD = 196
NPWG = 49
K1GRID = NPROD + NPWG + 1
PT = 0
FR = 0x190000
OFFS = 0x1A0000
ENT = 0x200000
WSZ = 0x900000
WIN = 40
CAPS = 8256
RECS = 0
SRCS = CAPS * 4
SEL = SRCS + CAPS * 2
CNT = SEL + 1792
FLAGS = CNT + 256
QT = FLAGS + 128
AGG = QT + 64 * 256
AGS = 272
STAGE = AGG + 64 * AGS
K2LDS = STAGE + 16 * 4096
PADLO = 54 * 32
assert STAGE % 256 == 0

LOG2E = 1.4426950408889634
def f2u(f): return struct.unpack('<I', struct.pack('<f', f))[0]
NLOG2E = f2u(-LOG2E)
NLN2 = f2u(-0.6931471805599453)

L = []
def A(s): L.append(s)
def v(i, n=1): return f"v{i}" if n == 1 else f"v[{i}:{i+n-1}]"
def s(i, n=1): return f"s{i}" if n == 1 else f"s[{i}:{i+n-1}]"

def srd(d, lo, hi, nrec, add=0, stride=0):
    if add:
        A(f"s_add_u32 s{d}, s{lo}, {add:#x}")
        A(f"s_addc_u32 s{d+1}, s{hi}, 0")
        A(f"s_and_b32 s{d+1}, s{d+1}, 0xffff")
    else:
        A(f"s_mov_b32 s{d}, s{lo}")
        A(f"s_and_b32 s{d+1}, s{hi}, 0xffff")
    if stride:
        A(f"s_or_b32 s{d+1}, s{d+1}, {stride << 16:#x}")
    A(f"s_mov_b32 s{d+2}, {nrec:#x}")
    A(f"s_mov_b32 s{d+3}, 0x20000")

def scan(r):
    for sh in (1, 2, 4, 8):
        A("s_nop 1")
        A(f"v_add_u32_dpp v{r}, v{r}, v{r} row_shr:{sh} row_mask:0xf bank_mask:0xf bound_ctrl:0")
    A("s_nop 1")
    A(f"v_add_u32_dpp v{r}, v{r}, v{r} row_bcast:15 row_mask:0xa bank_mask:0xf")
    A("s_nop 1")
    A(f"v_add_u32_dpp v{r}, v{r}, v{r} row_bcast:31 row_mask:0xc bank_mask:0xf")

def kernel_head(name):
    A(f".globl {name}")
    A(".p2align 8")
    A(f".type {name},@function")
    A(f"{name}:")

def kernel_desc(name, vg, sg):
    A(f".amdhsa_kernel {name}")
    A(f"  .amdhsa_next_free_vgpr {vg}")
    A(f"  .amdhsa_next_free_sgpr {sg}")
    A(f"  .amdhsa_accum_offset {(vg + 3) // 4 * 4}")
    A("  .amdhsa_group_segment_fixed_size 0")
    A("  .amdhsa_kernarg_size 72")
    A("  .amdhsa_user_sgpr_count 2")
    A("  .amdhsa_user_sgpr_kernarg_segment_ptr 1")
    A("  .amdhsa_system_sgpr_workgroup_id_x 1")
    A(".end_amdhsa_kernel")

K1_STG = 0
K1_CNT = 32768
K1_START = K1_CNT + 1024
K1LDS = K1_START + 1024

def gen_k1():
    kernel_head("mpnn_part_kernel")
    A(f"s_cmp_ge_u32 s2, {NPROD}")
    A("s_cbranch_scc1 K1_other")
    A("s_load_dwordx2 s[4:5], s[0:1], 8")
    A("s_load_dwordx4 s[8:11], s[0:1], 16")
    A("s_load_dwordx2 s[6:7], s[0:1], 64")
    A("s_lshl_b32 s3, s2, 12")
    A("v_lshl_add_u32 v1, v0, 2, s3")
    A("v_lshlrev_b32 v2, 2, v1")
    A("v_lshlrev_b32 v3, 1, v1")
    A("v_mov_b32 v4, 0")
    A("v_lshlrev_b32 v5, 2, v0")
    A("v_cmp_gt_u32 vcc, 0x100, v0")
    A("s_and_saveexec_b64 s[30:31], vcc")
    A(f"ds_write_b32 v5, v4 offset:{K1_CNT}")
    A("s_mov_b64 exec, s[30:31]")
    A("s_waitcnt lgkmcnt(0)")
    srd(12, 10, 11, E * 4)
    srd(16, 8, 9, E * 4)
    srd(20, 4, 5, E * 2)
    A("buffer_load_dwordx4 v[8:11], v2, s[12:15], 0 offen")
    A("buffer_load_dwordx2 v[16:17], v3, s[20:23], 0 offen")
    A("buffer_load_dwordx4 v[12:15], v2, s[16:19], 0 offen")
    srd(24, 6, 7, WSZ)
    A(f"s_mov_b32 s28, {E}")
    A("v_cmp_gt_u32 s[30:31], s28, v1")
    A("s_mov_b32 s29, 0xffff0000")
    A("v_mov_b32 v4, 1")
    A("s_barrier")
    A("s_waitcnt vmcnt(2)")
    for i in range(4):
        A(f"v_lshlrev_b32_sdwa v{20+i}, 2, v{8+i} dst_sel:DWORD dst_unused:UNUSED_PAD src0_sel:DWORD src1_sel:BYTE_0")
    A("s_mov_b64 exec, s[30:31]")
    for i in range(4):
        A(f"ds_add_rtn_u32 v{24+i}, v{20+i}, v4 offset:{K1_CNT}")
    A("s_mov_b64 exec, -1")
    for i in range(4):
        A(f"v_lshrrev_b32 v{8+i}, 3, v{8+i}")
        A(f"v_and_b32 v{8+i}, 0x7e0, v{8+i}")
    A("s_waitcnt vmcnt(1)")
    A("v_lshl_or_b32 v8, v16, 16, v8")
    A("v_and_or_b32 v9, v16, s29, v9")
    A("v_lshl_or_b32 v10, v17, 16, v10")
    A("v_and_or_b32 v11, v17, s29, v11")
    A("v_and_b32 v6, 63, v0")
    A("v_lshlrev_b32 v6, 4, v6")
    A("s_waitcnt lgkmcnt(0)")
    A("s_barrier")
    A(f"ds_read_b128 v[28:31], v6 offset:{K1_CNT}")
    A("s_waitcnt lgkmcnt(0)")
    A("v_add_u32 v33, v28, v29")
    A("v_add_u32 v34, v33, v30")
    A("v_add_u32 v35, v34, v31")
    A("v_mov_b32 v36, v35")
    scan(36)
    A("v_sub_u32 v36, v36, v35")
    A("v_add_u32 v37, v36, v28")
    A("v_add_u32 v38, v36, v33")
    A("v_add_u32 v39, v36, v34")
    A(f"ds_write_b128 v6, v[36:39] offset:{K1_START}")
    A("s_waitcnt lgkmcnt(0)")
    for i in range(4):
        A(f"ds_read_b32 v{40+i}, v{20+i} offset:{K1_START}")
    A("v_cmp_gt_u32 vcc, 64, v0")
    A("s_cbranch_vccz K1_nooffs")
    for i in range(4):
        A(f"v_lshl_or_b32 v{44+i}, v{28+i}, 16, v{36+i}")
    A("s_lshl_b32 s3, s2, 10")
    A(f"s_add_u32 s3, s3, {OFFS:#x}")
    A("v_add_u32 v48, s3, v6")
    A("buffer_store_dwordx4 v[44:47], v48, s[24:27], 0 offen")
    A("K1_nooffs:")
    A("s_waitcnt lgkmcnt(0)")
    for i in range(4):
        A(f"v_add_lshl_u32 v{40+i}, v{40+i}, v{24+i}, 3")
    A("s_waitcnt vmcnt(0)")
    A("s_mov_b64 exec, s[30:31]")
    for i in range(4):
        A(f"ds_write2_b32 v{40+i}, v{8+i}, v{12+i} offset0:0 offset1:1")
    A("s_mov_b64 exec, -1")
    A("v_lshlrev_b32 v6, 4, v0")
    A("s_lshl_b32 s3, s2, 15")
    A(f"s_add_u32 s3, s3, {ENT:#x}")
    A("v_add_u32 v7, s3, v6")
    A("v_add_u32 v9, 0x4000, v7")
    A("s_waitcnt lgkmcnt(0)")
    A("s_barrier")
    A(f"ds_read_b128 v[12:15], v6 offset:{K1_STG}")
    A(f"ds_read_b128 v[16:19], v6 offset:{K1_STG + 16384}")
    A("s_waitcnt lgkmcnt(1)")
    A("buffer_store_dwordx4 v[12:15], v7, s[24:27], 0 offen")
    A("s_waitcnt lgkmcnt(0)")
    A("buffer_store_dwordx4 v[16:19], v9, s[24:27], 0 offen")
    A("s_endpgm")

    A("K1_other:")
    A(f"s_cmp_ge_u32 s2, {NPROD + NPWG}")
    A("s_cbranch_scc1 K1_frag")
    A("s_load_dwordx2 s[4:5], s[0:1], 0")
    A("s_load_dwordx2 s[8:9], s[0:1], 32")
    A("s_load_dwordx2 s[6:7], s[0:1], 64")
    A("v_lshlrev_b32 v1, 3, v0")
    A("v_and_b32 v2, 3, v0")
    A("v_lshlrev_b32 v2, 11, v2")
    A("v_lshrrev_b32 v3, 7, v0")
    A("v_lshl_or_b32 v2, v3, 8, v2")
    A("v_bfe_u32 v3, v0, 2, 2")
    A("v_lshl_or_b32 v2, v3, 6, v2")
    A("v_bfe_u32 v3, v0, 4, 3")
    A("v_lshl_or_b32 v2, v3, 1, v2")
    A(f"s_sub_u32 s3, s2, {NPROD}")
    A("s_lshl_b32 s3, s3, 8")
    A("v_lshrrev_b32 v3, 6, v0")
    A("v_lshlrev_b32 v3, 4, v3")
    A("v_and_b32 v4, 15, v0")
    A("v_add3_u32 v3, v3, v4, s3")
    A("v_lshlrev_b32 v3, 7, v3")
    A("v_bfe_u32 v4, v0, 4, 2")
    A("v_lshl_add_u32 v5, v4, 4, v3")
    A("v_lshl_add_u32 v6, v4, 5, v3")
    A("v_and_b32 v7, 63, v0")
    A("v_lshlrev_b32 v7, 4, v7")
    A("s_waitcnt lgkmcnt(0)")
    srd(12, 8, 9, 129 * 128)
    srd(16, 4, 5, N * 128)
    A("buffer_load_dwordx2 v[8:9], v1, s[12:15], 0 offen")
    A("buffer_load_dwordx4 v[12:15], v5, s[16:19], 0 offen")
    A("buffer_load_dwordx4 v[16:19], v5, s[16:19], 0 offen offset:64")
    srd(20, 6, 7, N * 128, add=PT)
    A(f"s_mov_b32 s28, {NLOG2E:#x}")
    A("s_waitcnt vmcnt(2)")
    A("ds_write_b16 v2, v8")
    A("ds_write_b16_d16_hi v2, v8 offset:16")
    A("ds_write_b16 v2, v9 offset:32")
    A("ds_write_b16_d16_hi v2, v9 offset:48")
    A("s_waitcnt lgkmcnt(0)")
    A("s_barrier")
    for i in range(8):
        A(f"ds_read_b128 v[{20+4*i}:{23+4*i}], v7 offset:{1024*i}")
    A("s_waitcnt vmcnt(0)")
    for ct in range(4):
        A(f"s_waitcnt lgkmcnt({6-2*ct})")
        A(f"v_mfma_f32_16x16x32_bf16 v[{52+4*ct}:{55+4*ct}], v[{20+8*ct}:{23+8*ct}], v[12:15], 0")
        A(f"v_mfma_f32_16x16x32_bf16 v[{52+4*ct}:{55+4*ct}], v[{24+8*ct}:{27+8*ct}], v[16:19], v[{52+4*ct}:{55+4*ct}]")
    A("s_nop 7")
    for i in range(16):
        A(f"v_mul_f32 v{52+i}, s28, v{52+i}")
    for i in range(8):
        A(f"v_cvt_pk_bf16_f32 v{20+i}, v{52+2*i}, v{53+2*i}")
    A("buffer_store_dwordx4 v[20:23], v6, s[20:23], 0 offen")
    A("buffer_store_dwordx4 v[24:27], v6, s[20:23], 0 offen offset:16")
    A("s_endpgm")

    A("K1_frag:")
    A(f"s_cmp_ge_u32 s2, {K1GRID}")
    A("s_cbranch_scc1 K1_done")
    A("s_load_dwordx4 s[8:11], s[0:1], 32")
    A("s_load_dwordx2 s[6:7], s[0:1], 64")
    A("v_lshlrev_b32 v1, 3, v0")
    A("v_add_u32 v4, 0x2000, v1")
    A("v_bfe_u32 v2, v0, 2, 2")
    A("v_lshlrev_b32 v2, 11, v2")
    A("v_lshrrev_b32 v3, 7, v0")
    A("v_lshl_or_b32 v2, v3, 8, v2")
    A("v_and_b32 v3, 3, v0")
    A("v_lshl_or_b32 v2, v3, 6, v2")
    A("v_bfe_u32 v3, v0, 4, 3")
    A("v_lshl_or_b32 v2, v3, 1, v2")
    A("v_add_u32 v5, 0x2000, v2")
    A("v_add_u32 v6, 0x4000, v2")
    A("s_waitcnt lgkmcnt(0)")
    srd(12, 8, 9, 129 * 128)
    srd(16, 10, 11, 128 * 128)
    srd(20, 6, 7, 3 * 8192, add=FR)
    A("buffer_load_dwordx2 v[8:9], v4, s[12:15], 0 offen")
    A("buffer_load_dwordx2 v[10:11], v1, s[16:19], 0 offen")
    A("buffer_load_dwordx2 v[12:13], v4, s[16:19], 0 offen")
    for m, (ar, dr) in enumerate(((2, 8), (5, 10), (6, 12))):
        A(f"s_waitcnt vmcnt({2 - m + 4 * m})")
        A(f"buffer_store_short v{dr}, v{ar}, s[20:23], 0 offen")
        A(f"buffer_store_short_d16_hi v{dr}, v{ar}, s[20:23], 0 offen offset:16")
        A(f"buffer_store_short v{dr+1}, v{ar}, s[20:23], 0 offen offset:32")
        A(f"buffer_store_short_d16_hi v{dr+1}, v{ar}, s[20:23], 0 offen offset:48")
    A("K1_done:")
    A("s_endpgm")

D = [[0, 16], [32, 48]]
VA = 64
A3 = 80
B3 = [84, 88]
ID = [92, 96]
NUM = [100, 104]
DEN = [102, 106]
CHK = 108
TX = 110
TN = 112
TD = 114
GI = [116, 118]
VAA = [120, 121]
VREC = 122
VSRC = 123
VSELC = 124
VB3C = 125
VAGG = 126
VSQ = 127
SX, SWS, SPT, SOUT, SWM = 8, 12, 16, 20, 24
SW, SMODE, SROFF = 28, 29, 30
SMASK = 32
SLEFT, SREL, STQ, SNP1, ST0, ST1, SQ2 = 48, 49, 50, 51, 52, 53, 54
SM0 = 56
S64 = 60
SKA = 62
SB = 64
SC0 = 66

def mfma32(d, a, b, c):
    cs = "0" if c is None else v(c, 16)
    A(f"v_mfma_f32_32x32x16_bf16 {v(d,16)}, {v(a,4)}, {v(b,4)}, {cs}")

def idx_reads(off):
    A(f"ds_read_u16 v{GI[0]}, v{VSRC} offset:{off}")
    A(f"ds_read_u16 v{GI[1]}, v{VSRC} offset:{off+32}")

def gather():
    for j in range(4):
        A(f"s_mov_b32 m0, s{SM0+j}")
        A("s_nop 0")
        so = "0" if j < 2 else f"s{S64}"
        A(f"buffer_load_dwordx4 {v(GI[j&1],2)}, {s(SPT,4)}, {so} idxen offen lds")

def rec_early(off):
    A(f"ds_read_b32 v{TX}, v{VREC} offset:{off}")

def addr_calc():
    A(f"v_cmp_ge_u32 vcc, s{SQ2}, v{VSQ}")
    A(f"s_bcnt1_i32_b64 s{ST0}, vcc")
    A(f"s_lshl_b32 s{ST1}, s{ST0}, 5")
    A(f"s_lshl_b32 s{ST0}, s{ST0}, 8")
    A(f"v_add_u32 v{TX+1}, s{ST0}, v{VB3C}")
    A("s_waitcnt lgkmcnt(0)")
    A(f"v_add_u32_sdwa v{TX}, v{TX}, v{VSELC} dst_sel:DWORD dst_unused:UNUSED_PAD src0_sel:WORD_0 src1_sel:DWORD")
    A(f"v_subrev_u32 v{TX}, s{ST1}, v{TX}")

def frag_reads(off):
    for t in range(2):
        A(f"ds_read2_b32 {v(B3[t],2)}, v{TX+1} offset0:{32*t} offset1:{64+32*t}")
        A(f"ds_read_b32 v{B3[t]+2}, v{TX+1} offset:{512+128*t}")
    A(f"ds_read_b96 {v(A3,3)}, v{TX}")
    A(f"ds_read_b32 v{A3+3}, v{VREC} offset:{off}")
    A("s_waitcnt vmcnt(0)")
    for sidx in range(4):
        A(f"ds_read_b128 {v(VA+4*sidx,4)}, v{VAA[sidx&1]} offset:{2048*(sidx>>1)}")

def m_ops(par, t):
    d = D[par][t]
    return [lambda: mfma32(d, VA + 8*t, ID[0], None),
            lambda: mfma32(d, VA + 8*t + 4, ID[1], d),
            lambda: mfma32(d, A3, B3[t], d)]

def ureg(par, t, r):
    if r < 8: return D[par ^ 1][1] + 8*t + r
    return D[par][t] + r - 8

def xphase(par, half, with_m):
    ms = m_ops(par ^ 1, half) if with_m else []
    A("s_setprio 1")
    n = 0
    for q in range(4*half, 4*half + 4):
        for t in range(2):
            for o in range(2):
                if ms and n % 4 == 0 and n // 4 < 3:
                    ms[n // 4]()
                r = 2*q + o
                A(f"v_exp_f32 v{ureg(par,t,r)}, v{D[par][t]+r}")
                n += 1
    A("s_setprio 0")

def step(par, q, slow):
    if not slow:
        for t in range(2):
            u = v(ureg(par, t, 2*q), 2); n = v(NUM[t], 2)
            A(f"v_pk_fma_f32 {n}, {n}, {u}, {n}")
        for t in range(2):
            z = v(D[par][t] + 2*q, 2); n = v(NUM[t], 2); d = v(DEN[t], 2)
            A(f"v_pk_fma_f32 {n}, {z}, {d}, {n}")
        for t in range(2):
            u = v(ureg(par, t, 2*q), 2); d = v(DEN[t], 2)
            A(f"v_pk_fma_f32 {d}, {d}, {u}, {d}")
    else:
        for t in range(2):
            u = v(ureg(par, t, 2*q), 2)
            A(f"v_pk_add_f32 {u}, {u}, 1.0 op_sel_hi:[1,0]")
        for t in range(2):
            for o in range(2):
                u = ureg(par, t, 2*q) + o
                A(f"v_rcp_f32 v{u}, v{u}")
        A("s_nop 0")
        for t in range(2):
            u = v(ureg(par, t, 2*q), 2); z = v(D[par][t] + 2*q, 2); n = v(NUM[t], 2)
            A(f"v_pk_fma_f32 {n}, {z}, {u}, {n}")

def flush_core(slow):
    if not slow:
        for t in range(2):
            A(f"v_pk_mul_f32 {v(TX,2)}, {v(NUM[t],2)}, {v(DEN[t],2)} op_sel:[0,1] op_sel_hi:[1,0]")
            A(f"v_mul_f32 v{TD+t}, v{DEN[t]}, v{DEN[t]+1}")
            A(f"v_add_f32 v{TN+t}, v{TX}, v{TX+1}")
        A(f"v_pk_fma_f32 {v(CHK,2)}, {v(TD,2)}, 4.0, {v(CHK,2)} op_sel_hi:[1,0,1]")
        A(f"v_rcp_f32 v{TD}, v{TD}")
        A(f"v_rcp_f32 v{TD+1}, v{TD+1}")
        A("s_nop 0")
        A(f"v_pk_mul_f32 {v(TN,2)}, {v(TN,2)}, {v(TD,2)}")
        A(f"ds_add_f32 v{VAGG}, v{TN}")
        A(f"ds_add_f32 v{VAGG}, v{TN+1} offset:128")
        A(f"v_pk_fma_f32 {v(CHK,2)}, {v(TN,2)}, 0, {v(CHK,2)} op_sel_hi:[1,0,1]")
    else:
        for t in range(2):
            A(f"v_add_f32 v{TN+t}, v{NUM[t]}, v{NUM[t]+1}")
        A(f"ds_add_f32 v{VAGG}, v{TN}")
        A(f"ds_add_f32 v{VAGG}, v{TN+1} offset:128")

def flush_block(tag, par, q, slow):
    A(f"{tag}_F{q}:")
    A(f"s_add_u32 s{SNP1}, s{SNP1}, 1")
    A(f"v_readlane_b32 s{ST0}, v{VSQ}, s{SNP1}")
    flush_core(slow)
    A(f"v_add_u32 v{VAGG}, {AGS}, v{VAGG}")
    A(f"s_sub_u32 s{SREL}, s{ST0}, s{STQ}")
    if not slow:
        for t in range(2):
            u = v(ureg(par, t, 2*q), 2); z = v(D[par][t] + 2*q, 2)
            A(f"v_pk_add_f32 {v(DEN[t],2)}, {u}, 1.0 op_sel_hi:[1,0]")
            A(f"v_pk_add_f32 {v(NUM[t],2)}, {z}, 0 op_sel_hi:[1,0]")
    else:
        for t in range(2):
            A(f"v_mov_b32 v{NUM[t]}, 0")
            A(f"v_mov_b32 v{NUM[t]+1}, 0")
        step(par, q, True)
    A(f"s_branch {tag}_A{q}")

def pphase(tag, par, half, slow):
    for q in range(4*half, 4*half + 4):
        A(f"s_cmp_eq_u32 s{SREL}, {q}")
        A(f"s_cbranch_scc1 {tag}_F{q}")
        step(par, q, slow)
        A(f"{tag}_A{q}:")

def epi_loads():
    A(f"v_mbcnt_lo_u32_b32 v{TN}, -1, 0")
    A(f"v_mbcnt_hi_u32_b32 v{TN}, -1, v{TN}")
    A(f"s_lshr_b32 s{ST0}, s{SW}, 2")
    A(f"s_lshl_b32 s{ST0}, s{ST0}, 12")
    A(f"s_add_u32 s{ST0}, s{ST0}, s{SB}")
    A(f"s_lshl_b32 s{ST0}, s{ST0}, 7")
    A(f"v_and_b32 v{TD}, 15, v{TN}")
    A(f"v_lshlrev_b32 v{TD}, 15, v{TD}")
    A(f"v_and_b32 v{TD+1}, 48, v{TN}")
    A(f"v_add3_u32 v{TD}, v{TD}, v{TD+1}, s{ST0}")
    A(f"s_and_b32 s{ST1}, s{SW}, 3")
    A(f"s_lshl_b32 s{ST1}, s{ST1}, 11")
    A(f"s_add_u32 s{ST1}, s{ST1}, {FR + 8192:#x}")
    A(f"v_lshl_add_u32 v{TN}, v{TN}, 4, s{ST1}")
    A(f"v_add_u32 v{TN+1}, 0x2000, v{TN}")
    A(f"buffer_load_dwordx4 v[64:67], v{TD}, {s(SX,4)}, 0 offen")
    A(f"buffer_load_dwordx4 v[68:71], v{TD}, {s(SX,4)}, 0 offen offset:64")
    A(f"buffer_load_dwordx4 v[72:75], v{TN}, {s(SWS,4)}, 0 offen")
    A(f"buffer_load_dwordx4 v[76:79], v{TN}, {s(SWS,4)}, 0 offen offset:1024")
    A(f"buffer_load_dwordx4 v[80:83], v{TN+1}, {s(SWS,4)}, 0 offen")
    A(f"buffer_load_dwordx4 v[84:87], v{TN+1}, {s(SWS,4)}, 0 offen offset:1024")

def tile_body(md, par, last):
    slow = md == "S"
    tag = f"{md}{'L' if last else 'M'}{par}"
    A(f"{tag}:")
    A("s_waitcnt lgkmcnt(0)")
    if last:
        epi_loads()
    else:
        A(f"s_cmp_lt_u32 s{SLEFT}, 2")
        A(f"s_cbranch_scc1 {tag}_ng")
        gather()
        A(f"{tag}_ng:")
    xphase(par, 0, not last)
    pphase(tag, par, 0, slow)
    if not last:
        rec_early((2 + par) * 128)
    xphase(par, 1, not last)
    if not last:
        A("s_waitcnt lgkmcnt(0)")
        A(f"s_cmp_lt_u32 s{SLEFT}, 2")
        A(f"s_cbranch_scc1 {tag}_nr")
        A(f"s_add_u32 s{SQ2}, s{STQ}, 16")
        addr_calc()
        frag_reads((2 + par) * 128)
        idx_reads((3 + par) * 64)
        A(f"{tag}_nr:")
    pphase(tag, par, 1, slow)
    if last:
        A(f"s_branch {md}_fin")
    else:
        if par == 1:
            A(f"v_add_u32 v{VREC}, 256, v{VREC}")
            A(f"v_add_u32 v{VSRC}, 128, v{VSRC}")
        A(f"s_add_u32 s{STQ}, s{STQ}, 8")
        A(f"s_sub_u32 s{SREL}, s{SREL}, 8")
        A(f"s_sub_u32 s{SLEFT}, s{SLEFT}, 1")
        A(f"s_cmp_eq_u32 s{SLEFT}, 0")
        A(f"s_cbranch_scc1 {md}L{par^1}")
        A(f"s_branch {md}M{par^1}")
    for q in range(8):
        flush_block(tag, par, q, slow)

def main_loop(md):
    for par in range(2):
        tile_body(md, par, False)
    for par in range(2):
        tile_body(md, par, True)
    A(f"{md}_fin:")
    flush_core(md == "S")
    A("s_branch K2_join")

def gen_k2():
    kernel_head("mpnn_main_kernel")
    A("s_cmp_ge_u32 s2, 256")
    A("s_cbranch_scc1 K2_done")
    A("s_load_dwordx2 s[4:5], s[0:1], 0")
    A("s_load_dwordx2 s[6:7], s[0:1], 32")
    A("s_load_dwordx2 s[68:69], s[0:1], 48")
    A("s_load_dwordx2 s[70:71], s[0:1], 64")
    A(f"s_mov_b32 s{SB}, s2")
    A("v_lshrrev_b32 v1, 6, v0")
    A(f"s_mov_b32 s{SMODE}, 0")
    A(f"v_readfirstlane_b32 s{SW}, v1")
    A(f"s_mov_b32 s{S64}, 64")
    A("s_waitcnt lgkmcnt(0)")
    srd(SWS, 70, 71, WSZ)
    srd(SX, 4, 5, N * 128)
    srd(SWM, 6, 7, 129 * 128)
    srd(SPT, 70, 71, N, add=PT, stride=128)
    srd(SOUT, 68, 69, N * 128)
    A(f"s_lshl_b32 s{ST0}, s{SW}, 12")
    A(f"s_add_u32 s{SM0}, s{ST0}, {STAGE}")
    for j in range(1, 4):
        A(f"s_add_u32 s{SM0+j}, s{SM0}, {1024*j}")
    A("K2_restart:")
    A(f"s_mov_b32 s{SROFF}, 0")
    A("K2_round:")
    A("v_mbcnt_lo_u32_b32 v1, -1, 0")
    A("v_mbcnt_hi_u32_b32 v1, -1, v1")
    A(f"s_lshl_b32 s{ST0}, s{SW}, 6")
    A(f"v_add_u32 v0, s{ST0}, v1")
    A("v_mul_u32_u24 v2, 0x3334, v0")
    A("v_lshrrev_b32 v2, 16, v2")
    A("v_mul_u32_u24 v3, 5, v2")
    A("v_sub_u32 v3, v0, v3")
    A(f"s_lshl_b32 s{ST0}, s{SB}, 2")
    A(f"s_add_u32 s{ST0}, s{ST0}, {OFFS:#x}")
    A(f"v_lshl_add_u32 v4, v2, 10, s{ST0}")
    A("v_mov_b32 v5, 0")
    A(f"v_cmp_gt_u32 vcc, {NPROD}, v2")
    A("s_and_saveexec_b64 s[32:33], vcc")
    A(f"buffer_load_dword v5, v4, {s(SWS,4)}, 0 offen")
    A("s_mov_b64 exec, s[32:33]")
    A(f"s_lshr_b32 s{ST0}, s{SW}, 2")
    A(f"s_lshl_b32 s{ST0}, s{ST0}, 12")
    A(f"s_add_u32 s{ST0}, s{ST0}, s{SB}")
    A(f"s_lshl_b32 s{ST0}, s{ST0}, 7")
    A("v_and_b32 v6, 15, v1")
    A("v_lshlrev_b32 v7, 15, v6")
    A("v_and_b32 v8, 48, v1")
    A(f"v_add3_u32 v7, v7, v8, s{ST0}")
    A(f"s_and_b32 s{ST1}, s{SW}, 3")
    A(f"s_lshl_b32 s{ST0}, s{ST1}, 11")
    A(f"s_add_u32 s{ST0}, s{ST0}, {FR:#x}")
    A(f"v_lshl_add_u32 v9, v1, 4, s{ST0}")
    A("v_and_b32 v10, 31, v1")
    A("v_lshlrev_b32 v11, 1, v10")
    A(f"v_add_u32 v11, {128*128}, v11")
    A(f"buffer_load_dwordx4 v[64:67], v7, {s(SX,4)}, 0 offen")
    A(f"buffer_load_dwordx4 v[68:71], v7, {s(SX,4)}, 0 offen offset:64")
    A(f"buffer_load_dwordx4 v[72:75], v9, {s(SWS,4)}, 0 offen")
    A(f"buffer_load_dwordx4 v[76:79], v9, {s(SWS,4)}, 0 offen offset:1024")
    A(f"buffer_load_ushort v{B3[0]+3}, v11, {s(SWM,4)}, 0 offen")
    A(f"buffer_load_ushort v{B3[1]+3}, v11, {s(SWM,4)}, 0 offen offset:64")
    A("v_lshrrev_b32 v12, 3, v0")
    A("v_bfe_u32 v13, v0, 2, 1")
    A("v_and_b32 v14, 3, v0")
    A("v_mad_u32_u24 v13, v13, 3, v14")
    A("v_cmp_eq_u32 vcc, v12, v13")
    A("v_cmp_ne_u32 s[34:35], 3, v14")
    A("s_and_b64 vcc, vcc, s[34:35]")
    A("v_mov_b32 v13, 0x3f803f80")
    A("v_lshlrev_b32 v14, 2, v0")
    A("v_cndmask_b32 v12, 0, v13, vcc")
    A(f"v_cmp_gt_u32 vcc, {(FLAGS + 4 - SEL)//4}, v0")
    A("s_and_saveexec_b64 s[32:33], vcc")
    A(f"ds_write_b32 v14, v12 offset:{SEL}")
    A("s_mov_b64 exec, s[32:33]")
    A(f"s_cmp_lg_u32 s{SROFF}, 0")
    A("s_cbranch_scc1 K2_noagg")
    for i in range(4):
        A(f"v_mov_b32 v{16+i}, 0")
    A("v_lshlrev_b32 v15, 4, v0")
    A(f"v_add_u32 v20, {AGG}, v15")
    A("ds_write_b128 v20, v[16:19]")
    A(f"v_mov_b32 v20, {FLAGS + 4}")
    A("ds_write_b32 v20, v16")
    A("K2_noagg:")
    A("v_lshrrev_b32 v12, 5, v1")
    A("v_lshlrev_b32 v13, 3, v12")
    A("v_sub_u32 v13, v10, v13")
    A("v_mov_b32 v14, 0x3f80")
    A("v_mov_b32 v15, 0x3f800000")
    for e in range(2):
        for jj in range(4):
            A(f"v_cmp_eq_u32 vcc, {16*e + 2*jj}, v13")
            A(f"v_cmp_eq_u32 s[34:35], {16*e + 2*jj + 1}, v13")
            A("s_nop 0")
            A(f"v_cndmask_b32 v{ID[e]+jj}, 0, v14, vcc")
            A(f"v_cndmask_b32 v{ID[e]+jj}, v{ID[e]+jj}, v15, s[34:35]")
    A(f"v_lshlrev_b32 v{VSELC}, 4, v12")
    A(f"v_add_u32 v{VSELC}, {SEL + 32}, v{VSELC}")
    A("v_mul_u32_u24 v13, 768, v12")
    A(f"v_lshl_add_u32 v{VB3C}, v10, 2, v13")
    A(f"v_add_u32 v{VB3C}, {QT - 256}, v{VB3C}")
    A("v_lshrrev_b32 v13, 4, v1")
    A("v_xor_b32 v13, v13, v1")
    A("v_and_b32 v13, 3, v13")
    A(f"v_lshlrev_b32 v{GI[0]+1}, 4, v13")
    A(f"v_lshlrev_b32 v{GI[1]+1}, 4, v13")
    A("v_bfe_u32 v13, v1, 2, 2")
    A("v_xor_b32 v13, v13, v12")
    A("v_lshlrev_b32 v13, 4, v13")
    A("v_lshl_add_u32 v13, v10, 6, v13")
    A(f"v_add_u32 v{VAA[0]}, s{SM0}, v13")
    A(f"v_xor_b32 v{VAA[1]}, 32, v{VAA[0]}")
    A("s_waitcnt vmcnt(6)")
    A("v_lshrrev_b32 v20, 16, v5")
    A(f"v_subrev_u32 v20, s{SROFF}, v20")
    A("v_lshlrev_b32 v3, 1, v3")
    A("v_sub_u32 v21, v20, v3")
    A("v_and_b32 v5, 0xffff, v5")
    A(f"v_add3_u32 v5, v5, v3, s{SROFF}")
    A("v_lshlrev_b32 v5, 3, v5")
    A("v_lshl_add_u32 v5, v2, 15, v5")
    A(f"v_add_u32 v5, {ENT:#x}, v5")
    for i in range(4):
        A(f"v_cmp_lt_i32 {s(SMASK+4*i,2)}, {10*i}, v21")
        A(f"v_cmp_lt_i32 {s(SMASK+4*i+2,2)}, {10*i+1}, v21")
    A(f"v_cmp_lt_i32 {s(SC0,2)}, {WIN}, v20")
    for i in range(4):
        A(f"s_mov_b64 exec, {s(SMASK+4*i,2)}")
        A(f"buffer_load_dwordx4 v[{24+4*i}:{27+4*i}], v5, {s(SWS,4)}, 0 offen offset:{80*i}")
    A("s_mov_b64 exec, -1")
    A("s_waitcnt vmcnt(6)")
    A("v_mfma_f32_16x16x32_bf16 v[16:19], v[72:75], v[64:67], 0")
    A("v_mfma_f32_16x16x32_bf16 v[16:19], v[76:79], v[68:71], v[16:19]")
    A(f"s_mov_b32 s{ST0}, {NLOG2E:#x}")
    A("s_waitcnt vmcnt(4)")
    A("v_cmp_lt_u32 vcc, 31, v1")
    for t in range(2):
        r = B3[t] + 3
        A(f"v_lshlrev_b32 v{r}, 16, v{r}")
        A(f"v_mul_f32 v{r}, s{ST0}, v{r}")
        A(f"v_and_b32 v22, 0xffff0000, v{r}")
        A(f"v_sub_f32 v23, v{r}, v22")
        A(f"v_cndmask_b32 v22, v22, v23, vcc")
        A(f"v_cvt_pk_bf16_f32 v{r}, 0, v22")
    A(f"s_lshr_b32 s{ST1}, s{SW}, 2")
    A(f"s_lshl_b32 s{ST1}, s{ST1}, 12")
    A(f"s_and_b32 s{SQ2}, s{SW}, 3")
    A(f"s_lshl_b32 s{SQ2}, s{SQ2}, 6")
    A(f"s_add_u32 s{ST1}, s{ST1}, s{SQ2}")
    A("v_lshlrev_b32 v22, 8, v6")
    A(f"v_add3_u32 v22, v22, v8, s{ST1}")
    for r in range(4):
        A(f"v_mul_f32 v{16+r}, s{ST0}, v{16+r}")
        A(f"v_and_b32 v23, 0xffff0000, v{16+r}")
        A(f"v_sub_f32 v{16+r}, v{16+r}, v23")
        A(f"v_cvt_pk_bf16_f32 v{16+r}, v{16+r}, v23")
    A(f"ds_write_b128 v22, v[16:19] offset:{QT}")
    A("v_mov_b32 v22, 1")
    A("s_waitcnt lgkmcnt(0)")
    A("s_barrier")
    for i in range(4):
        A(f"s_waitcnt vmcnt({3-i})")
        for f in range(2):
            k = 2*i + f
            A(f"v_bfe_u32 v{40+k}, v{24+4*i+2*f}, 3, 13")
        for f in range(2):
            k = 2*i + f
            A(f"s_mov_b64 exec, {s(SMASK+2*k,2)}")
            A(f"ds_add_rtn_u32 v{48+k}, v{40+k}, v22 offset:{CNT}")
        A("s_mov_b64 exec, -1")
    A(f"s_cmp_eq_u64 {s(SC0,2)}, 0")
    A("s_cbranch_scc1 K2_nomore")
    A(f"v_mov_b32 v23, {FLAGS}")
    A("ds_write_b32 v23, v22")
    A("K2_nomore:")
    A("v_lshlrev_b32 v12, 2, v1")
    A("s_waitcnt lgkmcnt(0)")
    A("s_barrier")
    A(f"ds_read_b32 v13, v12 offset:{CNT}")
    A("v_cmp_gt_u32 vcc, 49, v1")
    A("s_waitcnt lgkmcnt(0)")
    A("v_add_u32 v14, 3, v13")
    A("v_and_b32 v14, -4, v14")
    A("v_max_u32 v14, 8, v14")
    A("v_cndmask_b32 v14, 0, v14, vcc")
    A("v_mov_b32 v15, v14")
    scan(15)
    A("s_nop 0")
    A(f"v_readlane_b32 s{ST0}, v15, 63")
    A("v_sub_u32 v15, v15, v14")
    for k in range(8):
        A(f"ds_bpermute_b32 v{56+k}, v{40+k}, v15")
    A(f"v_lshrrev_b32 v{VSQ}, 2, v15")
    A(f"v_add_u32 v16, s{SW}, v13")
    A("v_cmp_lt_u32 vcc, v16, v14")
    A("v_add_u32 v16, v16, v15")
    A(f"s_add_u32 s{ST1}, s{ST0}, 31")
    A(f"s_cmp_eq_u32 s{SW}, 8")
    A("s_cbranch_scc0 K2_notail")
    A(f"v_add_u32 v16, s{ST0}, v1")
    A(f"s_and_b32 s{SQ2}, s{ST1}, -32")
    A(f"v_cmp_gt_u32 vcc, s{SQ2}, v16")
    A("K2_notail:")
    A("v_lshlrev_b32 v17, 2, v16")
    A("v_lshlrev_b32 v16, 1, v16")
    A(f"v_mov_b32 v18, {PADLO}")
    A("v_mov_b32 v19, 0xffff")
    A("s_mov_b64 exec, vcc")
    A(f"ds_write_b32 v17, v18 offset:{RECS}")
    A(f"ds_write_b16 v16, v19 offset:{SRCS}")
    A("s_mov_b64 exec, -1")
    A(f"s_lshr_b32 s{ST1}, s{ST1}, 5")
    A(f"s_lshr_b32 s{SLEFT}, s{ST1}, 4")
    A(f"s_and_b32 s{ST1}, s{ST1}, 15")
    A(f"s_mul_i32 s{STQ}, s{SLEFT}, s{SW}")
    A(f"s_min_u32 s{ST0}, s{SW}, s{ST1}")
    A(f"s_add_u32 s{STQ}, s{STQ}, s{ST0}")
    A(f"s_cmp_lt_u32 s{SW}, s{ST1}")
    A(f"s_addc_u32 s{SLEFT}, s{SLEFT}, 0")
    A("s_waitcnt lgkmcnt(2)")
    for k in range(8):
        A(f"v_add_lshl_u32 v{56+k}, v{56+k}, v{48+k}, 2")
        A(f"v_lshrrev_b32 v{48+k}, 1, v{56+k}")
    for k in range(8):
        e = 24 + 2*k
        A(f"s_mov_b64 exec, {s(SMASK+2*k,2)}")
        A(f"ds_write_b32 v{56+k}, v{e} offset:{RECS}")
        A(f"ds_write_b16 v{48+k}, v{e+1} offset:{SRCS}")
    A("s_mov_b64 exec, -1")
    def swap12(dst, src, tmp):
        A(f"v_lshlrev_b32 v{tmp}, 1, v{src}")
        A(f"v_and_b32 v{tmp}, 4, v{tmp}")
        A(f"v_and_b32 v{dst}, 0x19, v{src}")
        A(f"v_or_b32 v{dst}, v{dst}, v{tmp}")
        A(f"v_lshrrev_b32 v{tmp}, 1, v{src}")
        A(f"v_and_b32 v{tmp}, 2, v{tmp}")
        A(f"v_or_b32 v{dst}, v{dst}, v{tmp}")
    swap12(16, 10, 17)
    A(f"s_lshl_b32 s{ST0}, s{STQ}, 7")
    A(f"v_lshl_add_u32 v{VREC}, v16, 2, s{ST0}")
    A("v_lshrrev_b32 v18, 2, v1")
    swap12(16, 18, 17)
    A(f"s_lshl_b32 s{ST0}, s{STQ}, 6")
    A(f"s_add_u32 s{ST0}, s{ST0}, {SRCS}")
    A(f"v_lshl_add_u32 v{VSRC}, v16, 1, s{ST0}")
    A(f"s_lshl_b32 s{STQ}, s{STQ}, 3")
    A(f"v_cmp_ge_u32 vcc, s{STQ}, v{VSQ}")
    A(f"s_bcnt1_i32_b64 s{SNP1}, vcc")
    A(f"s_min_u32 s{SNP1}, s{SNP1}, 50")
    A(f"s_mul_i32 s{ST0}, s{SNP1}, {AGS}")
    A(f"s_add_u32 s{ST0}, s{ST0}, {AGG - AGS}")
    A(f"v_lshl_add_u32 v{VAGG}, v10, 2, s{ST0}")
    A(f"v_readlane_b32 s{ST0}, v{VSQ}, s{SNP1}")
    for t in range(2):
        for o in range(2):
            A(f"v_mov_b32 v{NUM[t]+o}, 0")
            A(f"v_mov_b32 v{DEN[t]+o}, 1.0")
    A(f"v_mov_b32 v{CHK}, 0")
    A(f"v_mov_b32 v{CHK+1}, 0")
    A(f"s_sub_u32 s{SREL}, s{ST0}, s{STQ}")
    A("s_waitcnt lgkmcnt(0)")
    A("s_barrier")
    A(f"s_cmp_eq_u32 s{SLEFT}, 0")
    A("s_cbranch_scc1 K2_notiles")
    A(f"s_sub_u32 s{SLEFT}, s{SLEFT}, 1")
    idx_reads(0)
    rec_early(0)
    A("s_waitcnt lgkmcnt(1)")
    gather()
    idx_reads(64)
    A(f"s_mov_b32 s{SQ2}, s{STQ}")
    addr_calc()
    frag_reads(0)
    A("s_waitcnt lgkmcnt(0)")
    A(f"s_cmp_eq_u32 s{SLEFT}, 0")
    A("s_cbranch_scc1 K2_pre1")
    gather()
    rec_early(128)
    A("K2_pre1:")
    for t in range(2):
        for m in m_ops(0, t):
            m()
    A(f"s_cmp_eq_u32 s{SLEFT}, 0")
    A("s_cbranch_scc1 K2_pre2")
    A(f"s_add_u32 s{SQ2}, s{STQ}, 8")
    addr_calc()
    frag_reads(128)
    idx_reads(128)
    A(f"s_cmp_eq_u32 s{SMODE}, 0")
    A("s_cbranch_scc1 FM0")
    A("s_branch SM0")
    A("K2_pre2:")
    A("s_nop 15")
    A(f"s_cmp_eq_u32 s{SMODE}, 0")
    A("s_cbranch_scc1 FL0")
    A("s_branch SL0")
    main_loop("F")
    main_loop("S")
    A("K2_notiles:")
    epi_loads()
    A("K2_join:")
    A(f"v_add_f32 v{CHK}, v{CHK}, v{CHK+1}")
    A("v_mov_b32 v0, 0x207")
    A(f"v_cmp_class_f32 vcc, v{CHK}, v0")
    A("s_cbranch_vccz K2_ok")
    A(f"v_mov_b32 v0, {FLAGS + 4}")
    A("v_mov_b32 v1, 1")
    A("ds_write_b32 v0, v1")
    A("K2_ok:")
    A("v_mbcnt_lo_u32_b32 v1, -1, 0")
    A("v_mbcnt_hi_u32_b32 v1, -1, v1")
    A("v_and_b32 v2, 15, v1")
    A("v_lshrrev_b32 v3, 4, v1")
    A(f"s_lshr_b32 s{ST0}, s{SW}, 2")
    A(f"s_mul_i32 s{ST1}, s{ST0}, {16*AGS}")
    A(f"s_add_u32 s{ST1}, s{ST1}, {AGG}")
    A(f"v_mul_u32_u24 v4, {AGS}, v2")
    A("v_lshl_add_u32 v4, v3, 5, v4")
    A(f"v_add_u32 v4, s{ST1}, v4")
    A(f"s_lshl_b32 s{ST0}, s{ST0}, 12")
    A(f"s_add_u32 s{ST0}, s{ST0}, s{SB}")
    A(f"s_lshl_b32 s{ST0}, s{ST0}, 7")
    A(f"s_and_b32 s{ST1}, s{SW}, 3")
    A(f"s_lshl_b32 s{ST1}, s{ST1}, 5")
    A(f"s_add_u32 s{ST0}, s{ST0}, s{ST1}")
    A("v_lshlrev_b32 v5, 15, v2")
    A("v_lshl_add_u32 v5, v3, 3, v5")
    A(f"v_add_u32 v5, s{ST0}, v5")
    A(f"v_mov_b32 v6, {FLAGS}")
    A("s_waitcnt vmcnt(2)")
    A("v_mfma_f32_16x16x32_bf16 v[32:35], v[72:75], v[64:67], 0")
    A("v_mfma_f32_16x16x32_bf16 v[32:35], v[76:79], v[68:71], v[32:35]")
    A("s_waitcnt lgkmcnt(0)")
    A("s_barrier")
    A("ds_read_b64 v[8:9], v6")
    for i in range(4):
        A(f"ds_read_b128 v[{12+4*i}:{15+4*i}], v4 offset:{128*(i>>1) + 16*(i&1)}")
    A(f"s_mov_b32 s{SC0}, {NLN2:#x}")
    A("s_waitcnt lgkmcnt(4)")
    A(f"v_readfirstlane_b32 s{ST0}, v8")
    A(f"v_readfirstlane_b32 s{ST1}, v9")
    A(f"s_andn2_b32 s{ST1}, s{ST1}, s{SMODE}")
    A(f"s_or_b32 s{SQ2}, s{ST0}, s{ST1}")
    A("s_cbranch_scc1 K2_rare")
    A("s_waitcnt lgkmcnt(0)")
    for i in range(16):
        A(f"v_mul_f32 v{12+i}, s{SC0}, v{12+i}")
    for i in range(8):
        A(f"v_cvt_pk_bf16_f32 v{36+i}, v{12+2*i}, v{13+2*i}")
    A("s_waitcnt vmcnt(0)")
    A("s_nop 0")
    A("v_mfma_f32_16x16x32_bf16 v[32:35], v[80:83], v[36:39], v[32:35]")
    A("v_mfma_f32_16x16x32_bf16 v[32:35], v[84:87], v[40:43], v[32:35]")
    A(f"s_mov_b32 s{SC0}, {NLOG2E:#x}")
    A("s_nop 7")
    A("v_cvt_pk_bf16_f32 v12, v32, v33")
    A("v_cvt_pk_bf16_f32 v13, v34, v35")
    A("v_lshlrev_b32 v16, 16, v12")
    A("v_and_b32 v17, 0xffff0000, v12")
    A("v_lshlrev_b32 v18, 16, v13")
    A("v_and_b32 v19, 0xffff0000, v13")
    for i in range(4):
        A(f"v_mul_f32 v{20+i}, s{SC0}, v{16+i}")
    for i in range(4):
        A(f"v_exp_f32 v{20+i}, v{20+i}")
    for i in range(4):
        A(f"v_add_f32 v{20+i}, 1.0, v{20+i}")
    for i in range(4):
        A(f"v_rcp_f32 v{20+i}, v{20+i}")
    for i in range(4):
        A(f"v_mul_f32 v{20+i}, v{16+i}, v{20+i}")
    A("v_cvt_pk_bf16_f32 v12, v20, v21")
    A("v_cvt_pk_bf16_f32 v13, v22, v23")
    A(f"buffer_store_dwordx2 v[12:13], v5, {s(SOUT,4)}, 0 offen")
    A("K2_done:")
    A("s_endpgm")
    A("K2_rare:")
    A("s_waitcnt vmcnt(0) lgkmcnt(0)")
    A("s_barrier")
    A(f"s_cmp_lg_u32 s{ST1}, 0")
    A("s_cbranch_scc1 K2_bad")
    A(f"s_add_u32 s{SROFF}, s{SROFF}, {WIN}")
    A("s_branch K2_round")
    A("K2_bad:")
    A(f"s_mov_b32 s{SMODE}, 1")
    A("s_branch K2_restart")

HEADER = """; MPNN edge MLP: out = silu([x, segsum_dst(silu([x_src, x_dst, e] @ w_msg))] @ w_upd)
"""

def main(path):
    A(HEADER.rstrip())
    A(f"; @launch kernel=mpnn_part_kernel grid=({K1GRID},1,1) block=(1024,1,1) lds={K1LDS}")
    A(f"; @launch kernel=mpnn_main_kernel grid=(256,1,1) block=(1024,1,1) lds={K2LDS}")
    A('.amdgcn_target "amdgcn-amd-amdhsa--gfx950"')
    A(".text")
    gen_k1()
    gen_k2()
    A('.section .rodata,"a"')
    A(".p2align 6")
    kernel_desc("mpnn_part_kernel", 72, 40)
    A(".p2align 6")
    kernel_desc("mpnn_main_kernel", 128, 80)
    open(path, "w").write("\n".join(L) + "\n")

if __name__ == "__main__":
    main(sys.argv[1] if len(sys.argv) > 1 else "standalone__mpnn_edge_mlp__graph.s")
```

```python
import sys, struct

N = 12500
E = 800000
NPROD = 196
NPWG = 49
K1GRID = NPROD + NPWG + 1
PT = 0
FR = 0x190000
OFFS = 0x1A0000
ENT = 0x200000
WSZ = 0x900000
WIN = 40
CAPS = 8256
RECS = 0
SRCS = CAPS * 4
SEL = SRCS + CAPS * 2
CNT = SEL + 1792
FLAGS = CNT + 256
QT = FLAGS + 128
AGG = QT + 64 * 256
AGS = 528
STAGE = (AGG + 50 * AGS + 255) // 256 * 256
K2LDS = STAGE + 16 * 4096
PADLO = 54 * 32
assert STAGE % 256 == 0

LOG2E = 1.4426950408889634
def f2u(f): return struct.unpack('<I', struct.pack('<f', f))[0]
NLOG2E = f2u(-LOG2E)
NLN2 = f2u(-0.6931471805599453)

L = []
PROF = False
EXP = set()
NST = [0]
def stamp():
    if PROF:
        i = NST[0]; NST[0] += 1
        A(f"s_memtime s[{72+2*i}:{73+2*i}]")
def A(s): L.append(s)
def v(i, n=1): return f"v{i}" if n == 1 else f"v[{i}:{i+n-1}]"
def s(i, n=1): return f"s{i}" if n == 1 else f"s[{i}:{i+n-1}]"

def srd(d, lo, hi, nrec, add=0, stride=0):
    if add:
        A(f"s_add_u32 s{d}, s{lo}, {add:#x}")
        A(f"s_addc_u32 s{d+1}, s{hi}, 0")
        A(f"s_and_b32 s{d+1}, s{d+1}, 0xffff")
    else:
        A(f"s_mov_b32 s{d}, s{lo}")
        A(f"s_and_b32 s{d+1}, s{hi}, 0xffff")
    if stride:
        A(f"s_or_b32 s{d+1}, s{d+1}, {stride << 16:#x}")
    A(f"s_mov_b32 s{d+2}, {nrec:#x}")
    A(f"s_mov_b32 s{d+3}, 0x20000")

def scan(r):
    for sh in (1, 2, 4, 8):
        A("s_nop 1")
        A(f"v_add_u32_dpp v{r}, v{r}, v{r} row_shr:{sh} row_mask:0xf bank_mask:0xf bound_ctrl:0")
    A("s_nop 1")
    A(f"v_add_u32_dpp v{r}, v{r}, v{r} row_bcast:15 row_mask:0xa bank_mask:0xf")
    A("s_nop 1")
    A(f"v_add_u32_dpp v{r}, v{r}, v{r} row_bcast:31 row_mask:0xc bank_mask:0xf")

def kernel_head(name):
    A(f".globl {name}")
    A(".p2align 8")
    A(f".type {name},@function")
    A(f"{name}:")

def kernel_desc(name, vg, sg):
    A(f".amdhsa_kernel {name}")
    A(f"  .amdhsa_next_free_vgpr {vg}")
    A(f"  .amdhsa_next_free_sgpr {sg}")
    A(f"  .amdhsa_accum_offset {(vg + 3) // 4 * 4}")
    A("  .amdhsa_group_segment_fixed_size 0")
    A("  .amdhsa_kernarg_size 72")
    A("  .amdhsa_user_sgpr_count 2")
    A("  .amdhsa_user_sgpr_kernarg_segment_ptr 1")
    A("  .amdhsa_system_sgpr_workgroup_id_x 1")
    A(".end_amdhsa_kernel")

K1_STG = 0
K1_CNT = 32768
K1_START = K1_CNT + 1024
K1LDS = K1_START + 1024

def gen_k1():
    kernel_head("mpnn_part_kernel")
    A(f"s_cmp_ge_u32 s2, {NPROD}")
    A("s_cbranch_scc1 K1_other")
    A("s_load_dwordx2 s[4:5], s[0:1], 8")
    A("s_load_dwordx4 s[8:11], s[0:1], 16")
    A("s_load_dwordx2 s[6:7], s[0:1], 64")
    A("s_lshl_b32 s3, s2, 12")
    A("v_lshl_add_u32 v1, v0, 2, s3")
    A("v_lshlrev_b32 v2, 2, v1")
    A("v_lshlrev_b32 v3, 1, v1")
    A("v_mov_b32 v4, 0")
    A("v_lshlrev_b32 v5, 2, v0")
    A("v_cmp_gt_u32 vcc, 0x100, v0")
    A("s_and_saveexec_b64 s[30:31], vcc")
    A(f"ds_write_b32 v5, v4 offset:{K1_CNT}")
    A("s_mov_b64 exec, s[30:31]")
    A("s_waitcnt lgkmcnt(0)")
    srd(12, 10, 11, E * 4)
    srd(16, 8, 9, E * 4)
    srd(20, 4, 5, E * 2)
    A("buffer_load_dwordx4 v[8:11], v2, s[12:15], 0 offen")
    A("buffer_load_dwordx2 v[16:17], v3, s[20:23], 0 offen")
    A("buffer_load_dwordx4 v[12:15], v2, s[16:19], 0 offen")
    srd(24, 6, 7, WSZ)
    A(f"s_mov_b32 s28, {E}")
    A("v_cmp_gt_u32 s[30:31], s28, v1")
    A("s_mov_b32 s29, 0xffff0000")
    A("v_mov_b32 v4, 1")
    A("s_barrier")
    A("s_waitcnt vmcnt(2)")
    for i in range(4):
        A(f"v_lshlrev_b32_sdwa v{20+i}, 2, v{8+i} dst_sel:DWORD dst_unused:UNUSED_PAD src0_sel:DWORD src1_sel:BYTE_0")
    A("s_mov_b64 exec, s[30:31]")
    for i in range(4):
        A(f"ds_add_rtn_u32 v{24+i}, v{20+i}, v4 offset:{K1_CNT}")
    A("s_mov_b64 exec, -1")
    for i in range(4):
        A(f"v_lshrrev_b32 v{8+i}, 3, v{8+i}")
        A(f"v_and_b32 v{8+i}, 0x7e0, v{8+i}")
    A("s_waitcnt vmcnt(1)")
    A("v_lshl_or_b32 v8, v16, 16, v8")
    A("v_and_or_b32 v9, v16, s29, v9")
    A("v_lshl_or_b32 v10, v17, 16, v10")
    A("v_and_or_b32 v11, v17, s29, v11")
    A("v_and_b32 v6, 63, v0")
    A("v_lshlrev_b32 v6, 4, v6")
    A("s_waitcnt lgkmcnt(0)")
    A("s_barrier")
    A(f"ds_read_b128 v[28:31], v6 offset:{K1_CNT}")
    A("s_waitcnt lgkmcnt(0)")
    A("v_add_u32 v33, v28, v29")
    A("v_add_u32 v34, v33, v30")
    A("v_add_u32 v35, v34, v31")
    A("v_mov_b32 v36, v35")
    scan(36)
    A("v_sub_u32 v36, v36, v35")
    A("v_add_u32 v37, v36, v28")
    A("v_add_u32 v38, v36, v33")
    A("v_add_u32 v39, v36, v34")
    A(f"ds_write_b128 v6, v[36:39] offset:{K1_START}")
    A("s_waitcnt lgkmcnt(0)")
    for i in range(4):
        A(f"ds_read_b32 v{40+i}, v{20+i} offset:{K1_START}")
    A("v_cmp_gt_u32 vcc, 64, v0")
    A("s_cbranch_vccz K1_nooffs")
    for i in range(4):
        A(f"v_lshl_or_b32 v{44+i}, v{28+i}, 16, v{36+i}")
    A("s_lshl_b32 s3, s2, 10")
    A(f"s_add_u32 s3, s3, {OFFS:#x}")
    A("v_add_u32 v48, s3, v6")
    A("buffer_store_dwordx4 v[44:47], v48, s[24:27], 0 offen")
    A("K1_nooffs:")
    A("s_waitcnt lgkmcnt(0)")
    for i in range(4):
        A(f"v_add_lshl_u32 v{40+i}, v{40+i}, v{24+i}, 3")
    A("s_waitcnt vmcnt(0)")
    A("s_mov_b64 exec, s[30:31]")
    for i in range(4):
        A(f"ds_write2_b32 v{40+i}, v{8+i}, v{12+i} offset0:0 offset1:1")
    A("s_mov_b64 exec, -1")
    A("v_lshlrev_b32 v6, 4, v0")
    A("s_lshl_b32 s3, s2, 15")
    A(f"s_add_u32 s3, s3, {ENT:#x}")
    A("v_add_u32 v7, s3, v6")
    A("v_add_u32 v9, 0x4000, v7")
    A("s_waitcnt lgkmcnt(0)")
    A("s_barrier")
    A(f"ds_read_b128 v[12:15], v6 offset:{K1_STG}")
    A(f"ds_read_b128 v[16:19], v6 offset:{K1_STG + 16384}")
    A("s_waitcnt lgkmcnt(1)")
    A("buffer_store_dwordx4 v[12:15], v7, s[24:27], 0 offen")
    A("s_waitcnt lgkmcnt(0)")
    A("buffer_store_dwordx4 v[16:19], v9, s[24:27], 0 offen")
    A("s_endpgm")

    A("K1_other:")
    A(f"s_cmp_ge_u32 s2, {NPROD + NPWG}")
    A("s_cbranch_scc1 K1_frag")
    A("s_load_dwordx2 s[4:5], s[0:1], 0")
    A("s_load_dwordx2 s[8:9], s[0:1], 32")
    A("s_load_dwordx2 s[6:7], s[0:1], 64")
    A("v_lshlrev_b32 v1, 3, v0")
    A("v_and_b32 v2, 3, v0")
    A("v_lshlrev_b32 v2, 11, v2")
    A("v_lshrrev_b32 v3, 7, v0")
    A("v_lshl_or_b32 v2, v3, 8, v2")
    A("v_bfe_u32 v3, v0, 2, 2")
    A("v_lshl_or_b32 v2, v3, 6, v2")
    A("v_bfe_u32 v3, v0, 4, 3")
    A("v_lshl_or_b32 v2, v3, 1, v2")
    A(f"s_sub_u32 s3, s2, {NPROD}")
    A("s_lshl_b32 s3, s3, 8")
    A("v_lshrrev_b32 v3, 6, v0")
    A("v_lshlrev_b32 v3, 4, v3")
    A("v_and_b32 v4, 15, v0")
    A("v_add3_u32 v3, v3, v4, s3")
    A("v_lshlrev_b32 v3, 7, v3")
    A("v_bfe_u32 v4, v0, 4, 2")
    A("v_lshl_add_u32 v5, v4, 4, v3")
    A("v_lshl_add_u32 v6, v4, 5, v3")
    A("v_and_b32 v7, 63, v0")
    A("v_lshlrev_b32 v7, 4, v7")
    A("s_waitcnt lgkmcnt(0)")
    srd(12, 8, 9, 129 * 128)
    srd(16, 4, 5, N * 128)
    A("buffer_load_dwordx2 v[8:9], v1, s[12:15], 0 offen")
    A("buffer_load_dwordx4 v[12:15], v5, s[16:19], 0 offen")
    A("buffer_load_dwordx4 v[16:19], v5, s[16:19], 0 offen offset:64")
    srd(20, 6, 7, N * 128, add=PT)
    A(f"s_mov_b32 s28, {NLOG2E:#x}")
    A("s_waitcnt vmcnt(2)")
    A("ds_write_b16 v2, v8")
    A("ds_write_b16_d16_hi v2, v8 offset:16")
    A("ds_write_b16 v2, v9 offset:32")
    A("ds_write_b16_d16_hi v2, v9 offset:48")
    A("s_waitcnt lgkmcnt(0)")
    A("s_barrier")
    for i in range(8):
        A(f"ds_read_b128 v[{20+4*i}:{23+4*i}], v7 offset:{1024*i}")
    A("s_waitcnt vmcnt(0)")
    for ct in range(4):
        A(f"s_waitcnt lgkmcnt({6-2*ct})")
        A(f"v_mfma_f32_16x16x32_bf16 v[{52+4*ct}:{55+4*ct}], v[{20+8*ct}:{23+8*ct}], v[12:15], 0")
        A(f"v_mfma_f32_16x16x32_bf16 v[{52+4*ct}:{55+4*ct}], v[{24+8*ct}:{27+8*ct}], v[16:19], v[{52+4*ct}:{55+4*ct}]")
    A("s_nop 7")
    for i in range(16):
        A(f"v_mul_f32 v{52+i}, s28, v{52+i}")
    for i in range(8):
        A(f"v_cvt_pk_bf16_f32 v{20+i}, v{52+2*i}, v{53+2*i}")
    A("buffer_store_dwordx4 v[20:23], v6, s[20:23], 0 offen")
    A("buffer_store_dwordx4 v[24:27], v6, s[20:23], 0 offen offset:16")
    A("s_endpgm")

    A("K1_frag:")
    A(f"s_cmp_ge_u32 s2, {K1GRID}")
    A("s_cbranch_scc1 K1_done")
    A("s_load_dwordx4 s[8:11], s[0:1], 32")
    A("s_load_dwordx2 s[6:7], s[0:1], 64")
    A("v_lshlrev_b32 v1, 3, v0")
    A("v_add_u32 v4, 0x2000, v1")
    A("v_bfe_u32 v2, v0, 2, 2")
    A("v_lshlrev_b32 v2, 11, v2")
    A("v_lshrrev_b32 v3, 7, v0")
    A("v_lshl_or_b32 v2, v3, 8, v2")
    A("v_and_b32 v3, 3, v0")
    A("v_lshl_or_b32 v2, v3, 6, v2")
    A("v_bfe_u32 v3, v0, 4, 3")
    A("v_lshl_or_b32 v2, v3, 1, v2")
    A("v_add_u32 v5, 0x2000, v2")
    A("v_add_u32 v6, 0x4000, v2")
    A("s_waitcnt lgkmcnt(0)")
    srd(12, 8, 9, 129 * 128)
    srd(16, 10, 11, 128 * 128)
    srd(20, 6, 7, 3 * 8192, add=FR)
    A("buffer_load_dwordx2 v[8:9], v4, s[12:15], 0 offen")
    A("buffer_load_dwordx2 v[10:11], v1, s[16:19], 0 offen")
    A("buffer_load_dwordx2 v[12:13], v4, s[16:19], 0 offen")
    for m, (ar, dr) in enumerate(((2, 8), (5, 10), (6, 12))):
        A(f"s_waitcnt vmcnt({2 - m + 4 * m})")
        A(f"buffer_store_short v{dr}, v{ar}, s[20:23], 0 offen")
        A(f"buffer_store_short_d16_hi v{dr}, v{ar}, s[20:23], 0 offen offset:16")
        A(f"buffer_store_short v{dr+1}, v{ar}, s[20:23], 0 offen offset:32")
        A(f"buffer_store_short_d16_hi v{dr+1}, v{ar}, s[20:23], 0 offen offset:48")
    A("K1_done:")
    A("s_endpgm")

D = [[0, 16], [32, 48]]
VA = 64
A3 = 80
B3 = [84, 88]
ID = [92, 96]
NUM = [100, 104]
DEN = [102, 106]
CHK = 108
TX = 110
TN = 112
TD = 114
GI = [116, 118]
VAA = [120, 121]
VREC = 122
VSRC = 123
VSELC = 124
VB3C = 125
VAGG = 126
VSQ = 127
SX, SWS, SPT, SOUT, SWM = 8, 12, 16, 20, 24
SW, SMODE, SROFF = 28, 29, 30
SMASK = 32
SLEFT, SREL, STQ, SNP1, ST0, ST1, SQ2 = 48, 49, 50, 51, 52, 53, 54
SM0 = 56
S64 = 60
SKA = 62
SB = 64
SC0 = 66

def mfma32(d, a, b, c):
    cs = "0" if c is None else v(c, 16)
    A(f"v_mfma_f32_32x32x16_bf16 {v(d,16)}, {v(a,4)}, {v(b,4)}, {cs}")

def idx_reads(off):
    A(f"ds_read_u16 v{GI[0]}, v{VSRC} offset:{off}")
    A(f"ds_read_u16 v{GI[1]}, v{VSRC} offset:{off+32}")

def gather():
    if "nogather" in EXP: return
    for j in range(4):
        A(f"s_mov_b32 m0, s{SM0+j}")
        A("s_nop 0")
        so = "0" if j < 2 else f"s{S64}"
        A(f"buffer_load_dwordx4 {v(GI[j&1],2)}, {s(SPT,4)}, {so} idxen offen lds")

def rec_early(off):
    A(f"ds_read_b32 v{TX}, v{VREC} offset:{off}")

def addr_calc():
    A(f"v_cmp_ge_u32 vcc, s{SQ2}, v{VSQ}")
    A(f"s_bcnt1_i32_b64 s{ST0}, vcc")
    A(f"s_lshl_b32 s{ST1}, s{ST0}, 5")
    A(f"s_lshl_b32 s{ST0}, s{ST0}, 8")
    A(f"v_add_u32 v{TX+1}, s{ST0}, v{VB3C}")
    A("s_waitcnt lgkmcnt(0)")
    A(f"v_add_u32_sdwa v{TX}, v{TX}, v{VSELC} dst_sel:DWORD dst_unused:UNUSED_PAD src0_sel:WORD_0 src1_sel:DWORD")
    A(f"v_subrev_u32 v{TX}, s{ST1}, v{TX}")

def frag_reads(off):
    if "nolds" in EXP:
        A("s_waitcnt vmcnt(0)")
        return
    for t in range(2):
        A(f"ds_read2_b32 {v(B3[t],2)}, v{TX+1} offset0:{32*t} offset1:{64+32*t}")
        A(f"ds_read_b32 v{B3[t]+2}, v{TX+1} offset:{512+128*t}")
    A(f"ds_read_b96 {v(A3,3)}, v{TX}")
    A(f"ds_read_b32 v{A3+3}, v{VREC} offset:{off}")
    A("s_waitcnt vmcnt(0)")
    for sidx in range(4):
        A(f"ds_read_b128 {v(VA+4*sidx,4)}, v{VAA[sidx&1]} offset:{2048*(sidx>>1)}")

def m_ops(par, t):
    d = D[par][t]
    return [lambda: mfma32(d, VA + 8*t, ID[0], None),
            lambda: mfma32(d, VA + 8*t + 4, ID[1], d),
            lambda: mfma32(d, A3, B3[t], d)]

def ureg(par, t, r):
    if r < 8: return D[par ^ 1][1] + 8*t + r
    return D[par][t] + r - 8

def xphase(par, half, with_m):
    ms = m_ops(par ^ 1, half) if with_m else []
    if "nomfma" in EXP: ms = []
    if "noprio" not in EXP: A("s_setprio 1")
    n = 0
    for q in range(4*half, 4*half + 4):
        for t in range(2):
            for o in range(2):
                if ms and n % 4 == 0 and n // 4 < 3:
                    ms[n // 4]()
                r = 2*q + o
                A(f"v_exp_f32 v{ureg(par,t,r)}, v{D[par][t]+r}")
                n += 1
    A("s_nop 0" if "noprio" in EXP else "s_setprio 0")

def step(par, q, slow):
    if not slow:
        for t in range(2):
            u = v(ureg(par, t, 2*q), 2); n = v(NUM[t], 2)
            A(f"v_pk_fma_f32 {n}, {n}, {u}, {n}")
        for t in range(2):
            z = v(D[par][t] + 2*q, 2); n = v(NUM[t], 2); d = v(DEN[t], 2)
            A(f"v_pk_fma_f32 {n}, {z}, {d}, {n}")
        for t in range(2):
            u = v(ureg(par, t, 2*q), 2); d = v(DEN[t], 2)
            A(f"v_pk_fma_f32 {d}, {d}, {u}, {d}")
    else:
        for t in range(2):
            u = v(ureg(par, t, 2*q), 2)
            A(f"v_pk_add_f32 {u}, {u}, 1.0 op_sel_hi:[1,0]")
        for t in range(2):
            for o in range(2):
                u = ureg(par, t, 2*q) + o
                A(f"v_rcp_f32 v{u}, v{u}")
        A("s_nop 0")
        for t in range(2):
            u = v(ureg(par, t, 2*q), 2); z = v(D[par][t] + 2*q, 2); n = v(NUM[t], 2)
            A(f"v_pk_fma_f32 {n}, {z}, {u}, {n}")

def flush_core(slow):
    if not slow:
        for t in range(2):
            A(f"v_pk_mul_f32 {v(TX,2)}, {v(NUM[t],2)}, {v(DEN[t],2)} op_sel:[0,1] op_sel_hi:[1,0]")
            A(f"v_mul_f32 v{TD+t}, v{DEN[t]}, v{DEN[t]+1}")
            A(f"v_add_f32 v{TN+t}, v{TX}, v{TX+1}")
        A(f"v_pk_fma_f32 {v(CHK,2)}, {v(TD,2)}, 4.0, {v(CHK,2)} op_sel_hi:[1,0,1]")
        A(f"v_rcp_f32 v{TD}, v{TD}")
        A(f"v_rcp_f32 v{TD+1}, v{TD+1}")
        A("s_nop 0")
        A(f"v_pk_mul_f32 {v(TN,2)}, {v(TN,2)}, {v(TD,2)}")
        A(f"v_cvt_f64_f32 {v(TX,2)}, v{TN}")
        A(f"v_cvt_f64_f32 {v(TD,2)}, v{TN+1}")
        A(f"ds_add_f64 v{VAGG}, {v(TX,2)}")
        A(f"ds_add_f64 v{VAGG}, {v(TD,2)} offset:256")
        A(f"v_pk_fma_f32 {v(CHK,2)}, {v(TN,2)}, 0, {v(CHK,2)} op_sel_hi:[1,0,1]")
    else:
        for t in range(2):
            A(f"v_add_f32 v{TN+t}, v{NUM[t]}, v{NUM[t]+1}")
        A(f"v_cvt_f64_f32 {v(TX,2)}, v{TN}")
        A(f"v_cvt_f64_f32 {v(TD,2)}, v{TN+1}")
        A(f"ds_add_f64 v{VAGG}, {v(TX,2)}")
        A(f"ds_add_f64 v{VAGG}, {v(TD,2)} offset:256")

def flush_block(tag, par, q, slow):
    A(f"{tag}_F{q}:")
    A(f"s_add_u32 s{SNP1}, s{SNP1}, 1")
    A(f"v_readlane_b32 s{ST0}, v{VSQ}, s{SNP1}")
    flush_core(slow)
    A(f"v_add_u32 v{VAGG}, {AGS}, v{VAGG}")
    A(f"s_sub_u32 s{SREL}, s{ST0}, s{STQ}")
    if not slow:
        for t in range(2):
            u = v(ureg(par, t, 2*q), 2); z = v(D[par][t] + 2*q, 2)
            A(f"v_pk_add_f32 {v(DEN[t],2)}, {u}, 1.0 op_sel_hi:[1,0]")
            A(f"v_pk_add_f32 {v(NUM[t],2)}, {z}, 0 op_sel_hi:[1,0]")
    else:
        for t in range(2):
            A(f"v_mov_b32 v{NUM[t]}, 0")
            A(f"v_mov_b32 v{NUM[t]+1}, 0")
        step(par, q, True)
    A(f"s_branch {tag}_A{q}")

def pphase(tag, par, half, slow):
    for q in range(4*half, 4*half + 4):
        if "nocheck" not in EXP:
            A(f"s_cmp_eq_u32 s{SREL}, {q}")
            A(f"s_cbranch_scc1 {tag}_F{q}")
        step(par, q, slow)
        A(f"{tag}_A{q}:")

def epi_loads():
    A(f"v_mbcnt_lo_u32_b32 v{TN}, -1, 0")
    A(f"v_mbcnt_hi_u32_b32 v{TN}, -1, v{TN}")
    A(f"s_lshr_b32 s{ST0}, s{SW}, 2")
    A(f"s_lshl_b32 s{ST0}, s{ST0}, 12")
    A(f"s_add_u32 s{ST0}, s{ST0}, s{SB}")
    A(f"s_lshl_b32 s{ST0}, s{ST0}, 7")
    A(f"v_and_b32 v{TD}, 15, v{TN}")
    A(f"v_lshlrev_b32 v{TD}, 15, v{TD}")
    A(f"v_and_b32 v{TD+1}, 48, v{TN}")
    A(f"v_add3_u32 v{TD}, v{TD}, v{TD+1}, s{ST0}")
    A(f"s_and_b32 s{ST1}, s{SW}, 3")
    A(f"s_lshl_b32 s{ST1}, s{ST1}, 11")
    A(f"s_add_u32 s{ST1}, s{ST1}, {FR + 8192:#x}")
    A(f"v_lshl_add_u32 v{TN}, v{TN}, 4, s{ST1}")
    A(f"v_add_u32 v{TN+1}, 0x2000, v{TN}")
    A(f"buffer_load_dwordx4 v[64:67], v{TD}, {s(SX,4)}, 0 offen")
    A(f"buffer_load_dwordx4 v[68:71], v{TD}, {s(SX,4)}, 0 offen offset:64")
    A(f"buffer_load_dwordx4 v[72:75], v{TN}, {s(SWS,4)}, 0 offen")
    A(f"buffer_load_dwordx4 v[76:79], v{TN}, {s(SWS,4)}, 0 offen offset:1024")
    A(f"buffer_load_dwordx4 v[80:83], v{TN+1}, {s(SWS,4)}, 0 offen")
    A(f"buffer_load_dwordx4 v[84:87], v{TN+1}, {s(SWS,4)}, 0 offen offset:1024")

def tile_body(md, par, last):
    slow = md == "S"
    tag = f"{md}{'L' if last else 'M'}{par}"
    A(f"{tag}:")
    A("s_waitcnt lgkmcnt(0)")
    if last:
        epi_loads()
    else:
        A(f"s_cmp_lt_u32 s{SLEFT}, 2")
        A(f"s_cbranch_scc1 {tag}_ng")
        gather()
        A(f"{tag}_ng:")
    xphase(par, 0, not last)
    pphase(tag, par, 0, slow)
    if not last:
        rec_early((2 + par) * 128)
    xphase(par, 1, not last)
    if not last:
        A("s_waitcnt lgkmcnt(0)")
        A(f"s_cmp_lt_u32 s{SLEFT}, 2")
        A(f"s_cbranch_scc1 {tag}_nr")
        A(f"s_add_u32 s{SQ2}, s{STQ}, 16")
        addr_calc()
        frag_reads((2 + par) * 128)
        idx_reads((3 + par) * 64)
        A(f"{tag}_nr:")
    pphase(tag, par, 1, slow)
    if last:
        A(f"s_branch {md}_fin")
    else:
        if par == 1:
            A(f"v_add_u32 v{VREC}, 256, v{VREC}")
            A(f"v_add_u32 v{VSRC}, 128, v{VSRC}")
        A(f"s_add_u32 s{STQ}, s{STQ}, 8")
        A(f"s_sub_u32 s{SREL}, s{SREL}, 8")
        A(f"s_sub_u32 s{SLEFT}, s{SLEFT}, 1")
        A(f"s_cmp_eq_u32 s{SLEFT}, 0")
        A(f"s_cbranch_scc1 {md}L{par^1}")
        A(f"s_branch {md}M{par^1}")
    for q in range(8):
        flush_block(tag, par, q, slow)

def main_loop(md):
    for par in range(2):
        tile_body(md, par, False)
    for par in range(2):
        tile_body(md, par, True)
    A(f"{md}_fin:")
    flush_core(md == "S")
    A("s_branch K2_join")

def gen_k2():
    kernel_head("mpnn_main_kernel")
    A("s_cmp_ge_u32 s2, 256")
    A("s_cbranch_scc1 K2_done")
    A("s_load_dwordx2 s[4:5], s[0:1], 0")
    A("s_load_dwordx2 s[6:7], s[0:1], 32")
    A("s_load_dwordx2 s[68:69], s[0:1], 48")
    A("s_load_dwordx2 s[70:71], s[0:1], 64")
    stamp()
    A(f"s_mov_b32 s{SB}, s2")
    A("v_lshrrev_b32 v1, 6, v0")
    A(f"s_mov_b32 s{SMODE}, 0")
    A(f"v_readfirstlane_b32 s{SW}, v1")
    A(f"s_mov_b32 s{S64}, 64")
    A("s_waitcnt lgkmcnt(0)")
    srd(SWS, 70, 71, WSZ)
    srd(SX, 4, 5, N * 128)
    srd(SWM, 6, 7, 129 * 128)
    srd(SPT, 70, 71, N, add=PT, stride=128)
    srd(SOUT, 68, 69, N * 128)
    A(f"s_lshl_b32 s{ST0}, s{SW}, 12")
    A(f"s_add_u32 s{SM0}, s{ST0}, {STAGE}")
    for j in range(1, 4):
        A(f"s_add_u32 s{SM0+j}, s{SM0}, {1024*j}")
    A("K2_restart:")
    A(f"s_mov_b32 s{SROFF}, 0")
    A("K2_round:")
    A("v_mbcnt_lo_u32_b32 v1, -1, 0")
    A("v_mbcnt_hi_u32_b32 v1, -1, v1")
    A(f"s_lshl_b32 s{ST0}, s{SW}, 6")
    A(f"v_add_u32 v0, s{ST0}, v1")
    A("v_mul_u32_u24 v2, 0x3334, v0")
    A("v_lshrrev_b32 v2, 16, v2")
    A("v_mul_u32_u24 v3, 5, v2")
    A("v_sub_u32 v3, v0, v3")
    A(f"s_lshl_b32 s{ST0}, s{SB}, 2")
    A(f"s_add_u32 s{ST0}, s{ST0}, {OFFS:#x}")
    A(f"v_lshl_add_u32 v4, v2, 10, s{ST0}")
    A("v_mov_b32 v5, 0")
    A(f"v_cmp_gt_u32 vcc, {NPROD}, v2")
    A("s_and_saveexec_b64 s[32:33], vcc")
    A(f"buffer_load_dword v5, v4, {s(SWS,4)}, 0 offen")
    A("s_mov_b64 exec, s[32:33]")
    A(f"s_lshr_b32 s{ST0}, s{SW}, 2")
    A(f"s_lshl_b32 s{ST0}, s{ST0}, 12")
    A(f"s_add_u32 s{ST0}, s{ST0}, s{SB}")
    A(f"s_lshl_b32 s{ST0}, s{ST0}, 7")
    A("v_and_b32 v6, 15, v1")
    A("v_lshlrev_b32 v7, 15, v6")
    A("v_and_b32 v8, 48, v1")
    A(f"v_add3_u32 v7, v7, v8, s{ST0}")
    A(f"s_and_b32 s{ST1}, s{SW}, 3")
    A(f"s_lshl_b32 s{ST0}, s{ST1}, 11")
    A(f"s_add_u32 s{ST0}, s{ST0}, {FR:#x}")
    A(f"v_lshl_add_u32 v9, v1, 4, s{ST0}")
    A("v_and_b32 v10, 31, v1")
    A("v_lshlrev_b32 v11, 1, v10")
    A(f"v_add_u32 v11, {128*128}, v11")
    A(f"buffer_load_dwordx4 v[64:67], v7, {s(SX,4)}, 0 offen")
    A(f"buffer_load_dwordx4 v[68:71], v7, {s(SX,4)}, 0 offen offset:64")
    A(f"buffer_load_dwordx4 v[72:75], v9, {s(SWS,4)}, 0 offen")
    A(f"buffer_load_dwordx4 v[76:79], v9, {s(SWS,4)}, 0 offen offset:1024")
    A(f"buffer_load_ushort v{B3[0]+3}, v11, {s(SWM,4)}, 0 offen")
    A(f"buffer_load_ushort v{B3[1]+3}, v11, {s(SWM,4)}, 0 offen offset:64")
    A("v_lshrrev_b32 v12, 3, v0")
    A("v_bfe_u32 v13, v0, 2, 1")
    A("v_and_b32 v14, 3, v0")
    A("v_mad_u32_u24 v13, v13, 3, v14")
    A("v_cmp_eq_u32 vcc, v12, v13")
    A("v_cmp_ne_u32 s[34:35], 3, v14")
    A("s_and_b64 vcc, vcc, s[34:35]")
    A("v_mov_b32 v13, 0x3f803f80")
    A("v_lshlrev_b32 v14, 2, v0")
    A("v_cndmask_b32 v12, 0, v13, vcc")
    A(f"v_cmp_gt_u32 vcc, {(FLAGS + 4 - SEL)//4}, v0")
    A("s_and_saveexec_b64 s[32:33], vcc")
    A(f"ds_write_b32 v14, v12 offset:{SEL}")
    A("s_mov_b64 exec, s[32:33]")
    A(f"s_cmp_lg_u32 s{SROFF}, 0")
    A("s_cbranch_scc1 K2_noagg")
    for i in range(4):
        A(f"v_mov_b32 v{16+i}, 0")
    A("v_lshlrev_b32 v15, 4, v0")
    A(f"v_add_u32 v20, {AGG}, v15")
    A("ds_write_b128 v20, v[16:19]")
    A("ds_write_b128 v20, v[16:19] offset:16384")
    A(f"v_mov_b32 v20, {FLAGS + 4}")
    A("ds_write_b32 v20, v16")
    A("K2_noagg:")
    A("v_lshrrev_b32 v12, 5, v1")
    A("v_lshlrev_b32 v13, 3, v12")
    A("v_sub_u32 v13, v10, v13")
    A("v_mov_b32 v14, 0x3f80")
    A("v_mov_b32 v15, 0x3f800000")
    for e in range(2):
        for jj in range(4):
            A(f"v_cmp_eq_u32 vcc, {16*e + 2*jj}, v13")
            A(f"v_cmp_eq_u32 s[34:35], {16*e + 2*jj + 1}, v13")
            A("s_nop 0")
            A(f"v_cndmask_b32 v{ID[e]+jj}, 0, v14, vcc")
            A(f"v_cndmask_b32 v{ID[e]+jj}, v{ID[e]+jj}, v15, s[34:35]")
    A(f"v_lshlrev_b32 v{VSELC}, 4, v12")
    A(f"v_add_u32 v{VSELC}, {SEL + 32}, v{VSELC}")
    A("v_mul_u32_u24 v13, 768, v12")
    A(f"v_lshl_add_u32 v{VB3C}, v10, 2, v13")
    A(f"v_add_u32 v{VB3C}, {QT - 256}, v{VB3C}")
    A("v_lshrrev_b32 v13, 4, v1")
    A("v_xor_b32 v13, v13, v1")
    A("v_and_b32 v13, 3, v13")
    A(f"v_lshlrev_b32 v{GI[0]+1}, 4, v13")
    A(f"v_lshlrev_b32 v{GI[1]+1}, 4, v13")
    A("v_bfe_u32 v13, v1, 2, 2")
    A("v_xor_b32 v13, v13, v12")
    A("v_lshlrev_b32 v13, 4, v13")
    A("v_lshl_add_u32 v13, v10, 6, v13")
    A(f"v_add_u32 v{VAA[0]}, s{SM0}, v13")
    A(f"v_xor_b32 v{VAA[1]}, 32, v{VAA[0]}")
    A("s_waitcnt vmcnt(6)")
    stamp()
    A("v_lshrrev_b32 v20, 16, v5")
    A(f"v_subrev_u32 v20, s{SROFF}, v20")
    A("v_lshlrev_b32 v3, 1, v3")
    A("v_sub_u32 v21, v20, v3")
    A("v_and_b32 v5, 0xffff, v5")
    A(f"v_add3_u32 v5, v5, v3, s{SROFF}")
    A("v_lshlrev_b32 v5, 3, v5")
    A("v_lshl_add_u32 v5, v2, 15, v5")
    A(f"v_add_u32 v5, {ENT:#x}, v5")
    for i in range(4):
        A(f"v_cmp_lt_i32 {s(SMASK+4*i,2)}, {10*i}, v21")
        A(f"v_cmp_lt_i32 {s(SMASK+4*i+2,2)}, {10*i+1}, v21")
    A(f"v_cmp_lt_i32 {s(SC0,2)}, {WIN}, v20")
    for i in range(4):
        A(f"s_mov_b64 exec, {s(SMASK+4*i,2)}")
        A(f"buffer_load_dwordx4 v[{24+4*i}:{27+4*i}], v5, {s(SWS,4)}, 0 offen offset:{80*i}")
    A("s_mov_b64 exec, -1")
    A("s_waitcnt vmcnt(6)")
    A("v_mfma_f32_16x16x32_bf16 v[16:19], v[72:75], v[64:67], 0")
    A("v_mfma_f32_16x16x32_bf16 v[16:19], v[76:79], v[68:71], v[16:19]")
    A(f"s_mov_b32 s{ST0}, {NLOG2E:#x}")
    A("s_waitcnt vmcnt(4)")
    A("v_cmp_lt_u32 vcc, 31, v1")
    for t in range(2):
        r = B3[t] + 3
        A(f"v_lshlrev_b32 v{r}, 16, v{r}")
        A(f"v_mul_f32 v{r}, s{ST0}, v{r}")
        A(f"v_and_b32 v22, 0xffff0000, v{r}")
        A(f"v_sub_f32 v23, v{r}, v22")
        A(f"v_cndmask_b32 v22, v22, v23, vcc")
        A(f"v_cvt_pk_bf16_f32 v{r}, 0, v22")
    A(f"s_lshr_b32 s{ST1}, s{SW}, 2")
    A(f"s_lshl_b32 s{ST1}, s{ST1}, 12")
    A(f"s_and_b32 s{SQ2}, s{SW}, 3")
    A(f"s_lshl_b32 s{SQ2}, s{SQ2}, 6")
    A(f"s_add_u32 s{ST1}, s{ST1}, s{SQ2}")
    A("v_lshlrev_b32 v22, 8, v6")
    A(f"v_add3_u32 v22, v22, v8, s{ST1}")
    for r in range(4):
        A(f"v_mul_f32 v{16+r}, s{ST0}, v{16+r}")
        A(f"v_and_b32 v23, 0xffff0000, v{16+r}")
        A(f"v_sub_f32 v{16+r}, v{16+r}, v23")
        A(f"v_cvt_pk_bf16_f32 v{16+r}, v{16+r}, v23")
    A(f"ds_write_b128 v22, v[16:19] offset:{QT}")
    A("v_mov_b32 v22, 1")
    A("s_waitcnt lgkmcnt(0)")
    A("s_barrier")
    stamp()
    for i in range(4):
        A(f"s_waitcnt vmcnt({3-i})")
        for f in range(2):
            k = 2*i + f
            A(f"v_bfe_u32 v{40+k}, v{24+4*i+2*f}, 3, 13")
        for f in range(2):
            k = 2*i + f
            A(f"s_mov_b64 exec, {s(SMASK+2*k,2)}")
            A(f"ds_add_rtn_u32 v{48+k}, v{40+k}, v22 offset:{CNT}")
        A("s_mov_b64 exec, -1")
    A(f"s_cmp_eq_u64 {s(SC0,2)}, 0")
    A("s_cbranch_scc1 K2_nomore")
    A(f"v_mov_b32 v23, {FLAGS}")
    A("ds_write_b32 v23, v22")
    A("K2_nomore:")
    A("v_lshlrev_b32 v12, 2, v1")
    A("s_waitcnt lgkmcnt(0)")
    A("s_barrier")
    stamp()
    A(f"ds_read_b32 v13, v12 offset:{CNT}")
    A("v_cmp_gt_u32 vcc, 49, v1")
    A("s_waitcnt lgkmcnt(0)")
    A("v_add_u32 v14, 3, v13")
    A("v_and_b32 v14, -4, v14")
    A("v_max_u32 v14, 8, v14")
    A("v_cndmask_b32 v14, 0, v14, vcc")
    A("v_mov_b32 v15, v14")
    scan(15)
    A("s_nop 0")
    A(f"v_readlane_b32 s{ST0}, v15, 63")
    A("v_sub_u32 v15, v15, v14")
    for k in range(8):
        A(f"ds_bpermute_b32 v{56+k}, v{40+k}, v15")
    A(f"v_lshrrev_b32 v{VSQ}, 2, v15")
    A(f"v_add_u32 v16, s{SW}, v13")
    A("v_cmp_lt_u32 vcc, v16, v14")
    A("v_add_u32 v16, v16, v15")
    A(f"s_add_u32 s{ST1}, s{ST0}, 31")
    A(f"s_cmp_eq_u32 s{SW}, 8")
    A("s_cbranch_scc0 K2_notail")
    A(f"v_add_u32 v16, s{ST0}, v1")
    A(f"s_and_b32 s{SQ2}, s{ST1}, -32")
    A(f"v_cmp_gt_u32 vcc, s{SQ2}, v16")
    A("K2_notail:")
    A("v_lshlrev_b32 v17, 2, v16")
    A("v_lshlrev_b32 v16, 1, v16")
    A(f"v_mov_b32 v18, {PADLO}")
    A("v_mov_b32 v19, 0xffff")
    A("s_mov_b64 exec, vcc")
    A(f"ds_write_b32 v17, v18 offset:{RECS}")
    A(f"ds_write_b16 v16, v19 offset:{SRCS}")
    A("s_mov_b64 exec, -1")
    A(f"s_lshr_b32 s{ST1}, s{ST1}, 5")
    A(f"s_lshr_b32 s{SLEFT}, s{ST1}, 4")
    A(f"s_and_b32 s{ST1}, s{ST1}, 15")
    A(f"s_mul_i32 s{STQ}, s{SLEFT}, s{SW}")
    A(f"s_min_u32 s{ST0}, s{SW}, s{ST1}")
    A(f"s_add_u32 s{STQ}, s{STQ}, s{ST0}")
    A(f"s_cmp_lt_u32 s{SW}, s{ST1}")
    A(f"s_addc_u32 s{SLEFT}, s{SLEFT}, 0")
    A("s_waitcnt lgkmcnt(2)")
    for k in range(8):
        A(f"v_add_lshl_u32 v{56+k}, v{56+k}, v{48+k}, 2")
        A(f"v_lshrrev_b32 v{48+k}, 1, v{56+k}")
    for k in range(8):
        e = 24 + 2*k
        A(f"s_mov_b64 exec, {s(SMASK+2*k,2)}")
        A(f"ds_write_b32 v{56+k}, v{e} offset:{RECS}")
        A(f"ds_write_b16 v{48+k}, v{e+1} offset:{SRCS}")
    A("s_mov_b64 exec, -1")
    def swap12(dst, src, tmp):
        A(f"v_lshlrev_b32 v{tmp}, 1, v{src}")
        A(f"v_and_b32 v{tmp}, 4, v{tmp}")
        A(f"v_and_b32 v{dst}, 0x19, v{src}")
        A(f"v_or_b32 v{dst}, v{dst}, v{tmp}")
        A(f"v_lshrrev_b32 v{tmp}, 1, v{src}")
        A(f"v_and_b32 v{tmp}, 2, v{tmp}")
        A(f"v_or_b32 v{dst}, v{dst}, v{tmp}")
    swap12(16, 10, 17)
    A(f"s_lshl_b32 s{ST0}, s{STQ}, 7")
    A(f"v_lshl_add_u32 v{VREC}, v16, 2, s{ST0}")
    A("v_lshrrev_b32 v18, 2, v1")
    swap12(16, 18, 17)
    A(f"s_lshl_b32 s{ST0}, s{STQ}, 6")
    A(f"s_add_u32 s{ST0}, s{ST0}, {SRCS}")
    A(f"v_lshl_add_u32 v{VSRC}, v16, 1, s{ST0}")
    A(f"s_lshl_b32 s{STQ}, s{STQ}, 3")
    A(f"v_cmp_ge_u32 vcc, s{STQ}, v{VSQ}")
    A(f"s_bcnt1_i32_b64 s{SNP1}, vcc")
    A(f"s_min_u32 s{SNP1}, s{SNP1}, 50")
    A(f"s_mul_i32 s{ST0}, s{SNP1}, {AGS}")
    A(f"s_add_u32 s{ST0}, s{ST0}, {AGG - AGS}")
    A(f"v_lshl_add_u32 v{VAGG}, v10, 3, s{ST0}")
    A(f"v_readlane_b32 s{ST0}, v{VSQ}, s{SNP1}")
    for t in range(2):
        for o in range(2):
            A(f"v_mov_b32 v{NUM[t]+o}, 0")
            A(f"v_mov_b32 v{DEN[t]+o}, 1.0")
    A(f"v_mov_b32 v{CHK}, 0")
    A(f"v_mov_b32 v{CHK+1}, 0")
    A(f"s_sub_u32 s{SREL}, s{ST0}, s{STQ}")
    A("s_waitcnt lgkmcnt(0)")
    A("s_barrier")
    stamp()
    A(f"s_cmp_eq_u32 s{SLEFT}, 0")
    A("s_cbranch_scc1 K2_notiles")
    A(f"s_sub_u32 s{SLEFT}, s{SLEFT}, 1")
    idx_reads(0)
    rec_early(0)
    A("s_waitcnt lgkmcnt(1)")
    gather()
    idx_reads(64)
    A(f"s_mov_b32 s{SQ2}, s{STQ}")
    addr_calc()
    frag_reads(0)
    A("s_waitcnt lgkmcnt(0)")
    A(f"s_cmp_eq_u32 s{SLEFT}, 0")
    A("s_cbranch_scc1 K2_pre1")
    gather()
    rec_early(128)
    A("K2_pre1:")
    for t in range(2):
        for m in m_ops(0, t):
            m()
    A(f"s_cmp_eq_u32 s{SLEFT}, 0")
    A("s_cbranch_scc1 K2_pre2")
    A(f"s_add_u32 s{SQ2}, s{STQ}, 8")
    addr_calc()
    frag_reads(128)
    idx_reads(128)
    stamp()
    A(f"s_cmp_eq_u32 s{SMODE}, 0")
    A("s_cbranch_scc1 FM0")
    A("s_branch SM0")
    A("K2_pre2:")
    A("s_nop 15")
    A(f"s_cmp_eq_u32 s{SMODE}, 0")
    A("s_cbranch_scc1 FL0")
    A("s_branch SL0")
    main_loop("F")
    main_loop("S")
    A("K2_notiles:")
    epi_loads()
    A("K2_join:")
    stamp()
    A(f"v_add_f32 v{CHK}, v{CHK}, v{CHK+1}")
    A("v_mov_b32 v0, 0x207")
    A(f"v_cmp_class_f32 vcc, v{CHK}, v0")
    A("s_branch K2_ok" if EXP else "s_cbranch_vccz K2_ok")
    A(f"v_mov_b32 v0, {FLAGS + 4}")
    A("v_mov_b32 v1, 1")
    A("ds_write_b32 v0, v1")
    A("K2_ok:")
    A("v_mbcnt_lo_u32_b32 v1, -1, 0")
    A("v_mbcnt_hi_u32_b32 v1, -1, v1")
    A("v_and_b32 v2, 15, v1")
    A("v_lshrrev_b32 v3, 4, v1")
    A(f"s_lshr_b32 s{ST0}, s{SW}, 2")
    A(f"s_mul_i32 s{ST1}, s{ST0}, {16*AGS}")
    A(f"s_add_u32 s{ST1}, s{ST1}, {AGG}")
    A(f"v_mul_u32_u24 v4, {AGS}, v2")
    A("v_lshl_add_u32 v4, v3, 6, v4")
    A(f"v_add_u32 v4, s{ST1}, v4")
    A(f"s_lshl_b32 s{ST0}, s{ST0}, 12")
    A(f"s_add_u32 s{ST0}, s{ST0}, s{SB}")
    A(f"s_lshl_b32 s{ST0}, s{ST0}, 7")
    A(f"s_and_b32 s{ST1}, s{SW}, 3")
    A(f"s_lshl_b32 s{ST1}, s{ST1}, 5")
    A(f"s_add_u32 s{ST0}, s{ST0}, s{ST1}")
    A("v_lshlrev_b32 v5, 15, v2")
    A("v_lshl_add_u32 v5, v3, 3, v5")
    A(f"v_add_u32 v5, s{ST0}, v5")
    A(f"v_mov_b32 v6, {FLAGS}")
    A("s_waitcnt vmcnt(2)")
    A("v_mfma_f32_16x16x32_bf16 v[32:35], v[72:75], v[64:67], 0")
    A("v_mfma_f32_16x16x32_bf16 v[32:35], v[76:79], v[68:71], v[32:35]")
    A("s_waitcnt lgkmcnt(0)")
    A("s_barrier")
    stamp()
    A("ds_read_b64 v[8:9], v6")
    for i in range(8):
        A(f"ds_read_b128 v[{88+4*i}:{91+4*i}], v4 offset:{256*(i>>2) + 16*(i&3)}")
    A(f"s_mov_b32 s{SC0}, {NLN2:#x}")
    A("s_waitcnt lgkmcnt(8)")
    A(f"v_readfirstlane_b32 s{ST0}, v8")
    A(f"v_readfirstlane_b32 s{ST1}, v9")
    A(f"s_andn2_b32 s{ST1}, s{ST1}, s{SMODE}")
    A(f"s_or_b32 s{SQ2}, s{ST0}, s{ST1}")
    A("s_cbranch_scc1 K2_rare")
    A("s_waitcnt lgkmcnt(0)")
    for i in range(16):
        A(f"v_cvt_f32_f64 v{12+i}, v[{88+2*i}:{89+2*i}]")
    for i in range(16):
        A(f"v_mul_f32 v{12+i}, s{SC0}, v{12+i}")
    for i in range(8):
        A(f"v_cvt_pk_bf16_f32 v{36+i}, v{12+2*i}, v{13+2*i}")
    A("s_waitcnt vmcnt(0)")
    A("s_nop 0")
    A("v_mfma_f32_16x16x32_bf16 v[32:35], v[80:83], v[36:39], v[32:35]")
    A("v_mfma_f32_16x16x32_bf16 v[32:35], v[84:87], v[40:43], v[32:35]")
    A(f"s_mov_b32 s{SC0}, {NLOG2E:#x}")
    A("s_nop 7")
    A("v_cvt_pk_bf16_f32 v12, v32, v33")
    A("v_cvt_pk_bf16_f32 v13, v34, v35")
    A("v_lshlrev_b32 v16, 16, v12")
    A("v_and_b32 v17, 0xffff0000, v12")
    A("v_lshlrev_b32 v18, 16, v13")
    A("v_and_b32 v19, 0xffff0000, v13")
    for i in range(4):
        A(f"v_mul_f32 v{20+i}, s{SC0}, v{16+i}")
    for i in range(4):
        A(f"v_exp_f32 v{20+i}, v{20+i}")
    for i in range(4):
        A(f"v_add_f32 v{20+i}, 1.0, v{20+i}")
    for i in range(4):
        A(f"v_rcp_f32 v{20+i}, v{20+i}")
    for i in range(4):
        A(f"v_mul_f32 v{20+i}, v{16+i}, v{20+i}")
    A("v_cvt_pk_bf16_f32 v12, v20, v21")
    A("v_cvt_pk_bf16_f32 v13, v22, v23")
    A(f"buffer_store_dwordx2 v[12:13], v5, {s(SOUT,4)}, 0 offen")
    if PROF:
        stamp()
        A("s_waitcnt lgkmcnt(0)")
        n = NST[0]
        for i in range(n):
            A(f"v_mov_b32 v{20+i}, s{72+2*i}")
        A(f"s_lshl_b32 s{ST0}, s{SB}, 4")
        A(f"s_add_u32 s{ST0}, s{ST0}, s{SW}")
        A(f"s_lshl_b32 s{ST0}, s{ST0}, 6")
        A(f"s_add_u32 s{ST0}, s{ST0}, 0x880000")
        A(f"v_mov_b32 v19, s{ST0}")
        A("s_mov_b64 exec, 1")
        for i in range(0, 12, 4):
            A(f"buffer_store_dwordx4 v[{20+i}:{23+i}], v19, {s(SWS,4)}, 0 offen offset:{4*i}")
    A("K2_done:")
    A("s_endpgm")
    A("K2_rare:")
    A("s_waitcnt vmcnt(0) lgkmcnt(0)")
    A("s_barrier")
    A(f"s_cmp_lg_u32 s{ST1}, 0")
    A("s_cbranch_scc1 K2_bad")
    A(f"s_add_u32 s{SROFF}, s{SROFF}, {WIN}")
    A("s_branch K2_round")
    A("K2_bad:")
    A(f"s_mov_b32 s{SMODE}, 1")
    A("s_branch K2_restart")

HEADER = """; MPNN edge MLP: out = silu([x, segsum_dst(silu([x_src, x_dst, e] @ w_msg))] @ w_upd)
"""

def main(path):
    A(HEADER.rstrip())
    A(f"; @launch kernel=mpnn_part_kernel grid=({K1GRID},1,1) block=(1024,1,1) lds={K1LDS}")
    A(f"; @launch kernel=mpnn_main_kernel grid=(256,1,1) block=(1024,1,1) lds={K2LDS}")
    A('.amdgcn_target "amdgcn-amd-amdhsa--gfx950"')
    A(".text")
    gen_k1()
    gen_k2()
    A('.section .rodata,"a"')
    A(".p2align 6")
    kernel_desc("mpnn_part_kernel", 72, 40)
    A(".p2align 6")
    kernel_desc("mpnn_main_kernel", 128, 96 if PROF else 80)
    open(path, "w").write("\n".join(L) + "\n")

if __name__ == "__main__":
    if len(sys.argv) > 2 and sys.argv[2] == "prof": PROF = True
    if len(sys.argv) > 3: EXP = set(sys.argv[3].split(","))
    main(sys.argv[1] if len(sys.argv) > 1 else "standalone__mpnn_edge_mlp__graph.s")
```

```python
import sys, struct

N = 12500
E = 800000
NPROD = 256
CH = 3136
NPWG = 49
K1GRID = NPROD
ENTS = 26624
PT = 0
FR = 0x190000
OFFS = 0x1A0000
ENT = 0x200000
WSZ = 0x900000
WIN = 32
CAPS = 4800
SEL = CAPS * 8
CNT = SEL + 1792
FLAGS = CNT + 256
CTAB = FLAGS + 128
QT = CTAB + 2560
QS = 272
XR = QT + 64 * QS
AGG = XR + 64 * 128
AGS = 528
STAGE = (AGG + 50 * AGS + 255) // 256 * 256
K2LDS = STAGE + 16 * 4096
W2L = STAGE
ABS = 144
PADLO = 54 * 32
assert K2LDS <= 163840 and XR <= 65535

LOG2E = 1.4426950408889634
def f2u(f): return struct.unpack('<I', struct.pack('<f', f))[0]
NLOG2E = f2u(-LOG2E)
NLN2 = f2u(-0.6931471805599453)

L = []
PROF = False
EXP = set()
NST = [0]
def A(s): L.append(s)
def v(i, n=1): return f"v{i}" if n == 1 else f"v[{i}:{i+n-1}]"
def s(i, n=1): return f"s{i}" if n == 1 else f"s[{i}:{i+n-1}]"
def stamp():
    if PROF:
        i = NST[0]; NST[0] += 1
        A(f"s_memtime s[{76+2*i}:{77+2*i}]" if i < 13 else "ERROR")
def k1stamp(i):
    if PROF: A(f"s_memtime s[{40+2*i}:{41+2*i}]")

def srd(d, lo, hi, nrec, add=0, stride=0):
    if add:
        A(f"s_add_u32 s{d}, s{lo}, {add:#x}")
        A(f"s_addc_u32 s{d+1}, s{hi}, 0")
        A(f"s_and_b32 s{d+1}, s{d+1}, 0xffff")
    else:
        if d != lo: A(f"s_mov_b32 s{d}, s{lo}")
        A(f"s_and_b32 s{d+1}, s{hi}, 0xffff")
    if stride:
        A(f"s_or_b32 s{d+1}, s{d+1}, {stride << 16:#x}")
    A(f"s_mov_b32 s{d+2}, {nrec:#x}")
    A(f"s_mov_b32 s{d+3}, 0x20000")

def scan(r):
    for sh in (1, 2, 4, 8):
        A("s_nop 1")
        A(f"v_add_u32_dpp v{r}, v{r}, v{r} row_shr:{sh} row_mask:0xf bank_mask:0xf bound_ctrl:0")
    A("s_nop 1")
    A(f"v_add_u32_dpp v{r}, v{r}, v{r} row_bcast:15 row_mask:0xa bank_mask:0xf")
    A("s_nop 1")
    A(f"v_add_u32_dpp v{r}, v{r}, v{r} row_bcast:31 row_mask:0xc bank_mask:0xf")

def kernel_head(name):
    A(f".globl {name}")
    A(".p2align 8")
    A(f".type {name},@function")
    A(f"{name}:")

def kernel_desc(name, vg, sg):
    A(f".amdhsa_kernel {name}")
    A(f"  .amdhsa_next_free_vgpr {vg}")
    A(f"  .amdhsa_next_free_sgpr {sg}")
    A(f"  .amdhsa_accum_offset {(vg + 3) // 4 * 4}")
    A("  .amdhsa_group_segment_fixed_size 0")
    A("  .amdhsa_kernarg_size 72")
    A("  .amdhsa_user_sgpr_count 2")
    A("  .amdhsa_user_sgpr_kernarg_segment_ptr 1")
    A("  .amdhsa_system_sgpr_workgroup_id_x 1")
    A(".end_amdhsa_kernel")

K1_CNT = ENTS
K1_START = K1_CNT + 1024
K1_W1 = K1_START + 1024
K1_XT = K1_W1 + 8192
K1LDS = K1_XT + 8192

def gen_k1():
    kernel_head("mpnn_part_kernel")
    A(f"s_cmp_ge_u32 s2, {NPROD}")
    A("s_cbranch_scc1 K1_done")
    if "k1nopart" in EXP: A("s_endpgm")
    k1stamp(0)
    A("s_load_dwordx4 s[12:15], s[0:1], 16")
    A("s_load_dwordx2 s[20:21], s[0:1], 8")
    A("s_load_dwordx2 s[24:25], s[0:1], 64")
    A(f"s_mul_i32 s3, s2, {CH}")
    A("v_lshl_add_u32 v1, v0, 2, s3")
    A("v_cmp_lt_u32 vcc, 831, v0")
    A("s_cbranch_vccnz K1_aux")
    A("v_lshlrev_b32 v2, 2, v1")
    A("v_lshlrev_b32 v3, 1, v1")
    A(f"s_add_u32 s28, s3, {CH}")
    A(f"s_min_u32 s28, s28, {E}")
    A("s_waitcnt lgkmcnt(0)")
    srd(16, 14, 15, E * 4)
    A("buffer_load_dwordx4 v[8:11], v2, s[16:19], 0 offen")
    srd(20, 20, 21, E * 2)
    A("buffer_load_dwordx2 v[16:17], v3, s[20:23], 0 offen")
    srd(12, 12, 13, E * 4)
    A("buffer_load_dwordx4 v[12:15], v2, s[12:15], 0 offen")
    srd(24, 24, 25, WSZ)
    A("v_cmp_gt_u32 s[30:31], s28, v1")
    A("s_mov_b32 s29, 0xffff0000")
    A("v_mov_b32 v4, 1")
    A("v_and_b32 v6, 63, v0")
    A("v_lshlrev_b32 v6, 4, v6")
    A("v_lshlrev_b32 v5, 4, v0")
    A(f"s_mul_i32 s3, s2, {ENTS}")
    A(f"s_add_u32 s32, s3, {ENT:#x}")
    A(f"s_add_u32 s33, s32, {832*16}")
    A("s_lshl_b32 s34, s2, 10")
    A(f"s_add_u32 s34, s34, {OFFS:#x}")
    A("s_barrier")
    k1stamp(1)
    A("s_waitcnt vmcnt(2)")
    k1stamp(2)
    for i in range(4):
        A(f"v_lshlrev_b32_sdwa v{20+i}, 2, v{8+i} dst_sel:DWORD dst_unused:UNUSED_PAD src0_sel:DWORD src1_sel:BYTE_0")
    A("s_mov_b64 exec, s[30:31]")
    for i in range(4):
        A(f"ds_add_rtn_u32 v{24+i}, v{20+i}, v4 offset:{K1_CNT}")
    A("s_mov_b64 exec, -1")
    for i in range(4):
        A(f"v_lshrrev_b32 v{8+i}, 3, v{8+i}")
        A(f"v_and_b32 v{8+i}, 0x7e0, v{8+i}")
    A("s_waitcnt lgkmcnt(0)")
    A("s_barrier")
    k1stamp(3)
    A(f"ds_read_b128 v[28:31], v6 offset:{K1_CNT}")
    A("s_waitcnt vmcnt(1)")
    A("v_lshl_or_b32 v8, v16, 16, v8")
    A("v_and_or_b32 v9, v16, s29, v9")
    A("v_lshl_or_b32 v10, v17, 16, v10")
    A("v_and_or_b32 v11, v17, s29, v11")
    A("s_waitcnt lgkmcnt(0)")
    A("v_add_u32 v33, v28, v29")
    A("v_add3_u32 v36, v33, v30, v31")
    A("v_add_u32 v34, v33, v30")
    A("v_mov_b32 v35, v36")
    A("v_add_u32_dpp v36, v36, v36 row_shr:1 row_mask:0xf bank_mask:0xf bound_ctrl:0")
    for sh in (2, 4, 8):
        A("s_nop 1")
        A(f"v_add_u32_dpp v36, v36, v36 row_shr:{sh} row_mask:0xf bank_mask:0xf bound_ctrl:0")
    A("s_nop 1")
    A("v_add_u32_dpp v36, v36, v36 row_bcast:15 row_mask:0xa bank_mask:0xf")
    A("s_nop 1")
    A("v_add_u32_dpp v36, v36, v36 row_bcast:31 row_mask:0xc bank_mask:0xf")
    A("v_sub_u32 v36, v36, v35")
    A("v_add_u32 v37, v36, v28")
    A("v_add_u32 v38, v36, v33")
    A("v_add_u32 v39, v36, v34")
    A(f"ds_write_b128 v6, v[36:39] offset:{K1_START}")
    for i in range(4):
        A(f"ds_read_b32 v{40+i}, v{20+i} offset:{K1_START}")
    A("v_cmp_gt_u32 vcc, 64, v0")
    A("s_waitcnt vmcnt(0)")
    k1stamp(4)
    A("s_cbranch_vccz K1_nooffs")
    for i in range(4):
        A(f"v_lshl_or_b32 v{44+i}, v{28+i}, 16, v{36+i}")
    A("buffer_store_dwordx4 v[44:47], v6, s[24:27], s34 offen sc0 sc1")
    A("K1_nooffs:")
    for i in range(4):
        A(f"s_waitcnt lgkmcnt({3-i})")
        A(f"v_add_lshl_u32 v{40+i}, v{40+i}, v{24+i}, 3")
    A("s_mov_b64 exec, s[30:31]")
    for i in range(4):
        A(f"ds_write2_b32 v{40+i}, v{8+i}, v{12+i} offset0:0 offset1:1")
    A("s_mov_b64 exec, -1")
    A("s_waitcnt lgkmcnt(0)")
    A("s_barrier")
    k1stamp(5)
    sfx = " sc0 sc1"
    if "k1nostore" not in EXP:
        A("ds_read_b128 v[12:15], v5")
        A(f"ds_read_b128 v[16:19], v5 offset:{832*16}")
        A("s_waitcnt lgkmcnt(1)")
        A("buffer_store_dwordx4 v[12:15], v5, s[24:27], s32 offen" + sfx)
        A("s_waitcnt lgkmcnt(0)")
        A("buffer_store_dwordx4 v[16:19], v5, s[24:27], s33 offen" + sfx)
    if PROF:
        k1stamp(6)
        A("s_waitcnt vmcnt(0)")
        k1stamp(7)
        A("s_waitcnt lgkmcnt(0)")
        for i in range(8):
            A(f"v_mov_b32 v{20+i}, s{40+2*i}")
        A("v_lshrrev_b32 v30, 6, v0")
        A("s_lshl_b32 s3, s2, 4")
        A("v_add_u32 v30, s3, v30")
        A("v_lshlrev_b32 v30, 6, v30")
        A("v_add_u32 v30, 0x8c0000, v30")
        A("s_mov_b64 exec, 1")
        A("buffer_store_dwordx4 v[20:23], v30, s[24:27], 0 offen")
        A("buffer_store_dwordx4 v[24:27], v30, s[24:27], 0 offen offset:16")
    A("s_endpgm")
    A("K1_aux:")
    A("s_load_dwordx2 s[8:9], s[0:1], 0")
    A("s_load_dwordx2 s[16:17], s[0:1], 32")
    A("v_lshrrev_b32 v1, 6, v0")
    A("v_and_b32 v2, 63, v0")
    A("v_readfirstlane_b32 s28, v1")
    A("v_lshlrev_b32 v3, 4, v2")
    A("s_cmp_eq_u32 s28, 15")
    A("s_cbranch_scc0 K1_p")
    for i in range(4):
        A(f"v_mov_b32 v{4+i}, 0")
    A(f"ds_write_b128 v3, v[4:7] offset:{K1_CNT}")
    A("s_waitcnt lgkmcnt(0)")
    A("s_barrier")
    A("s_endpgm")
    A("K1_p:")
    A("s_sub_u32 s28, s28, 13")
    A("s_lshl_b32 s29, s2, 1")
    A("s_add_u32 s29, s29, s28")
    A("s_lshl_b32 s29, s29, 12")
    A("s_lshl_b32 s30, s28, 12")
    A("v_and_b32 v4, 0x300, v3")
    A("v_lshrrev_b32 v4, 4, v4")
    A("v_xor_b32 v4, v4, v3")
    A("v_add_u32 v4, s29, v4")
    A("v_xor_b32 v36, 64, v4")
    A("v_and_b32 v5, 16, v2")
    A("v_lshlrev_b32 v5, 1, v5")
    A("v_xor_b32 v5, v5, v3")
    A("v_add_u32 v5, s30, v5")
    A("v_xor_b32 v37, 64, v5")
    A("s_waitcnt lgkmcnt(0)")
    srd(8, 8, 9, N * 128)
    srd(16, 16, 17, 129 * 128)
    srd(24, 24, 25, N * 128)
    A(f"s_add_u32 s31, s30, {K1_W1}")
    A(f"s_add_u32 s32, s30, {K1_XT}")
    A("s_mov_b32 m0, s31")
    A("s_nop 0")
    for i in range(4):
        A(f"buffer_load_dwordx4 v{37 if i & 1 else 5}, s[16:19], 0 offen offset:{1024*i} lds")
    A("s_mov_b32 m0, s32")
    A("s_nop 0")
    for i in range(4):
        A(f"buffer_load_dwordx4 v{36 if i & 1 else 4}, s[8:11], 0 offen offset:{1024*i} lds")
    A("s_barrier")
    A("v_lshrrev_b32 v6, 5, v2")
    A("v_bfe_u32 v7, v2, 2, 2")
    A("v_lshl_add_u32 v7, v6, 3, v7")
    A("v_lshlrev_b32 v7, 7, v7")
    A("v_and_b32 v8, 1, v2")
    A("v_xor_b32 v8, v8, v6")
    A("v_lshl_add_u32 v7, v8, 6, v7")
    A("v_bfe_u32 v8, v2, 1, 1")
    A("v_lshl_add_u32 v7, v8, 3, v7")
    A("v_and_b32 v8, 16, v2")
    A("v_add_u32 v7, v8, v7")
    A("v_and_b32 v8, 8, v2")
    A("v_lshl_add_u32 v7, v8, 2, v7")
    A("v_xor_b32 v38, 32, v7")
    A("v_and_b32 v8, 31, v2")
    A("v_bfe_u32 v9, v2, 1, 3")
    A("v_xor_b32 v9, v9, v6")
    A("v_lshlrev_b32 v9, 4, v9")
    A("v_lshl_add_u32 v9, v8, 7, v9")
    A("v_add_u32 v9, s32, v9")
    A("v_bfe_u32 v10, v2, 1, 3")
    A("v_lshlrev_b32 v11, 2, v6")
    A("v_xor_b32 v10, v10, v11")
    A("v_lshlrev_b32 v10, 4, v10")
    A("v_lshl_add_u32 v10, v8, 7, v10")
    A("v_add_u32 v10, s32, v10")
    A("v_add_u32 v11, s32, v3")
    for ks in range(1, 4):
        A(f"v_xor_b32 v{39+ks}, {32*ks}, v9")
        A(f"v_xor_b32 v{42+ks}, {16*ks}, v10")
    A(f"s_mov_b32 s34, {NLOG2E:#x}")
    A(f"s_mov_b32 s35, {NLOG2E:#x}")
    A("s_waitcnt vmcnt(0)")
    A("s_barrier")
    A(f"s_cmp_ge_u32 s29, {N*128}")
    A("s_cbranch_scc1 K1_done")
    for ks in range(4):
        A(f"ds_read_b128 v[{12+4*ks}:{15+4*ks}], v{9 if ks == 0 else 39+ks}")
    for T in range(2):
        for ks in range(4):
            for u in range(2):
                r = 48 + 16*T + 4*ks + 2*u
                A(f"ds_read_b64_tr_b16 v[{r}:{r+1}], v{38 if T else 7} offset:{K1_W1 + ks*2048 + u*512}")
    for T in range(2):
        A(f"s_waitcnt lgkmcnt({8 - 8*T})")
        for ks in range(4):
            d = 80 + 16*T
            c = "0" if ks == 0 else f"v[{d}:{d+15}]"
            A(f"v_mfma_f32_32x32x16_bf16 v[{d}:{d+15}], v[{48+16*T+4*ks}:{51+16*T+4*ks}], v[{12+4*ks}:{15+4*ks}], {c}")
    A("s_nop 7")
    for T in range(2):
        for i in range(8):
            r = 80 + 16*T + 2*i
            A(f"v_pk_mul_f32 v[{r}:{r+1}], v[{r}:{r+1}], s[34:35]")
        for i in range(8):
            r = 80 + 16*T + 2*i
            A(f"v_cvt_pk_bf16_f32 v{48+8*T+i}, v{r}, v{r+1}")
        for c in range(2):
            k = 2*T + c
            A(f"ds_write_b128 v{10 if k == 0 else 42+k}, v[{48+4*k}:{51+4*k}]")
    for i in range(4):
        A(f"ds_read_b128 v[{12+4*i}:{15+4*i}], v11 offset:{1024*i}")
    for i in range(4):
        A(f"s_waitcnt lgkmcnt({3-i})")
        A(f"buffer_store_dwordx4 v[{12+4*i}:{15+4*i}], v{36 if i & 1 else 4}, s[24:27], 0 offen offset:{1024*i} sc0 sc1")
    A("K1_done:")
    A("s_endpgm")

D = [[0, 16], [32, 48]]
VA = 64
A3 = 80
B3 = [84, 88]
ID = [92, 96]
NUM = [100, 104]
DEN = [102, 106]
CHK = 108
TX = 110
TN = 112
TD = 114
GI = [116, 118]
VAA = [120, 121]
VREC = 122
VSRC = 123
VSELC = 124
VB3C = 125
VAGG = 126
VSQ = 127
SXR, SWS, SPT, SOUT, SWM = 8, 12, 16, 20, 24
SW, SMODE, SROFF, SWIN = 28, 29, 30, 31
SMASK = 32
SLEFT, SREL, STQ, SNP1, ST0, ST1, SQ2, ST2 = 48, 49, 50, 51, 52, 53, 54, 55
SM0 = 56
S64 = 60
SCT32 = 61
SWU = 72
SN49 = 62
SB = 64
SNT = 65
SC0 = 66
SQS = 4
SW2L = 5
SC1 = 70
SOFA = 68
SENA = 69

def mfma32(d, a, b, c):
    cs = "0" if c is None else v(c, 16)
    A(f"v_mfma_f32_32x32x16_bf16 {v(d,16)}, {v(a,4)}, {v(b,4)}, {cs}")

def idx_reads(tile):
    A(f"ds_read_u16 v{GI[0]}, v{VSRC} offset:{tile*256}")
    A(f"ds_read_u16 v{GI[1]}, v{VSRC} offset:{tile*256+128}")

def gather():
    if "nogather" in EXP: return
    for j in range(4):
        A(f"s_mov_b32 m0, s{SM0+j}")
        A("s_nop 0")
        so = "0" if j < 2 else f"s{S64}"
        A(f"buffer_load_dwordx4 {v(GI[j&1],2)}, {s(SPT,4)}, {so} idxen offen lds")

def rec_early(tile):
    A(f"ds_read_b32 v{TX}, v{VREC} offset:{tile*256}")

def addr_calc(wait=True):
    A(f"v_cmp_ge_u32 vcc, s{SQ2}, v{VSQ}")
    A(f"s_bcnt1_i32_b64 s{ST0}, vcc")
    A(f"s_lshl_b32 s{ST1}, s{ST0}, 5")
    A(f"s_mul_i32 s{ST0}, s{ST0}, {QS}")
    A(f"v_add_u32 v{TX+1}, s{ST0}, v{VB3C}")
    if wait: A("s_waitcnt lgkmcnt(0)")
    A(f"v_add_u32_sdwa v{TX}, v{TX}, v{VSELC} dst_sel:DWORD dst_unused:UNUSED_PAD src0_sel:WORD_0 src1_sel:DWORD")
    A(f"v_subrev_u32 v{TX}, s{ST1}, v{TX}")

def aux_reads(tile):
    if "nolds" in EXP: return
    for t in range(2):
        A(f"ds_read2_b32 {v(B3[t],2)}, v{TX+1} offset0:{32*t} offset1:{QS//4+32*t}")
        A(f"ds_read_b32 v{B3[t]+2}, v{TX+1} offset:{2*QS+128*t}")
    A(f"ds_read_b96 {v(A3,3)}, v{TX}")
    A(f"ds_read_b32 v{A3+3}, v{VREC} offset:{tile*256}")

def a_reads():
    A("s_waitcnt vmcnt(0)")
    if "nolds" in EXP: return
    for sidx in range(4):
        A(f"ds_read_b128 {v(VA+4*sidx,4)}, v{VAA[sidx&1]} offset:{2048*(sidx>>1)}")

def m_ops(par, t):
    d = D[par][t]
    return [lambda: mfma32(d, VA + 8*t, ID[0], None),
            lambda: mfma32(d, VA + 8*t + 4, ID[1], d),
            lambda: mfma32(d, A3, B3[t], d)]

def ureg(par, t, r):
    if r < 8: return D[par ^ 1][1] + 8*t + r
    return D[par][t] + r - 8

def xphase(par, half, ms, gap=4):
    if "nomfma" in EXP: ms = []
    pass
    n = 0
    for q in range(4*half, 4*half + 4):
        for t in range(2):
            for o in range(2):
                if n % gap == 0 and n // gap < len(ms):
                    ms[n // gap]()
                r = 2*q + o
                A(f"v_exp_f32 v{ureg(par,t,r)}, v{D[par][t]+r}")
                n += 1
    pass

def step(par, q, slow):
    if not slow:
        for t in range(2):
            u = v(ureg(par, t, 2*q), 2); n = v(NUM[t], 2)
            A(f"v_pk_fma_f32 {n}, {n}, {u}, {n}")
        for t in range(2):
            z = v(D[par][t] + 2*q, 2); n = v(NUM[t], 2); d = v(DEN[t], 2)
            A(f"v_pk_fma_f32 {n}, {z}, {d}, {n}")
        for t in range(2):
            u = v(ureg(par, t, 2*q), 2); d = v(DEN[t], 2)
            A(f"v_pk_fma_f32 {d}, {d}, {u}, {d}")
    else:
        for t in range(2):
            u = v(ureg(par, t, 2*q), 2)
            A(f"v_pk_add_f32 {u}, {u}, 1.0 op_sel_hi:[1,0]")
        for t in range(2):
            for o in range(2):
                u = ureg(par, t, 2*q) + o
                A(f"v_rcp_f32 v{u}, v{u}")
        A("s_nop 0")
        for t in range(2):
            u = v(ureg(par, t, 2*q), 2); z = v(D[par][t] + 2*q, 2); n = v(NUM[t], 2)
            A(f"v_pk_fma_f32 {n}, {z}, {u}, {n}")

def flush_core(slow):
    if not slow:
        for t in range(2):
            A(f"v_pk_mul_f32 {v(TX,2)}, {v(NUM[t],2)}, {v(DEN[t],2)} op_sel:[0,1] op_sel_hi:[1,0]")
            A(f"v_mul_f32 v{TD+t}, v{DEN[t]}, v{DEN[t]+1}")
            A(f"v_add_f32 v{TN+t}, v{TX}, v{TX+1}")
        A(f"v_pk_fma_f32 {v(CHK,2)}, {v(TD,2)}, 4.0, {v(CHK,2)} op_sel_hi:[1,0,1]")
        A(f"v_rcp_f32 v{TD}, v{TD}")
        A(f"v_rcp_f32 v{TD+1}, v{TD+1}")
        A("s_nop 0")
        A(f"v_pk_mul_f32 {v(TN,2)}, {v(TN,2)}, {v(TD,2)}")
    else:
        for t in range(2):
            A(f"v_add_f32 v{TN+t}, v{NUM[t]}, v{NUM[t]+1}")
    A(f"v_cvt_f64_f32 {v(TX,2)}, v{TN}")
    A(f"v_cvt_f64_f32 {v(TD,2)}, v{TN+1}")
    A(f"ds_add_f64 v{VAGG}, {v(TX,2)}")
    A(f"ds_add_f64 v{VAGG}, {v(TD,2)} offset:256")
    if not slow:
        A(f"v_pk_fma_f32 {v(CHK,2)}, {v(TN,2)}, 0, {v(CHK,2)} op_sel_hi:[1,0,1]")

def flush_block(tag, par, q, slow):
    A(f"{tag}_F{q}:")
    A(f"s_add_u32 s{SNP1}, s{SNP1}, 1")
    A(f"v_readlane_b32 s{ST0}, v{VSQ}, s{SNP1}")
    flush_core(slow)
    A(f"v_add_u32 v{VAGG}, {AGS}, v{VAGG}")
    A(f"s_sub_u32 s{SREL}, s{ST0}, s{STQ}")
    if not slow:
        for t in range(2):
            u = v(ureg(par, t, 2*q), 2); z = v(D[par][t] + 2*q, 2)
            A(f"v_pk_add_f32 {v(DEN[t],2)}, {u}, 1.0 op_sel_hi:[1,0]")
            A(f"v_pk_add_f32 {v(NUM[t],2)}, {z}, 0 op_sel_hi:[1,0]")
    else:
        for t in range(2):
            A(f"v_mov_b32 v{NUM[t]}, 0")
            A(f"v_mov_b32 v{NUM[t]+1}, 0")
        step(par, q, True)
    if q & 3 == 3:
        A(f"s_branch {tag}_J{q>>2}")
    else:
        A(f"s_branch {tag}_A{q}")

def pphase(tag, par, half, slow):
    if "nocheck" not in EXP:
        A(f"s_cmp_lt_u32 s{SREL}, {4*half+4}")
        A(f"s_cbranch_scc1 {tag}_C{half}")
    for q in range(4*half, 4*half + 4):
        step(par, q, slow)
    A(f"{tag}_J{half}:")

def checked_blocks(tag, par, slow):
    if tag[1] == "M":
        A(f"{tag}_lo:")
        A("s_setprio 2")
        A(f"s_cmp_eq_u32 s{SLEFT}, 2")
        A(f"s_cbranch_scc1 {tag}_g")
        A("s_setprio 1")
        A("s_waitcnt lgkmcnt(0)")
        A(f"s_branch {tag}_ng")
    for half in range(2):
        A(f"{tag}_C{half}:")
        for q in range(4*half, 4*half + 4):
            A(f"s_cmp_eq_u32 s{SREL}, {q}")
            A(f"s_cbranch_scc1 {tag}_F{q}")
            step(par, q, slow)
            if q & 3 != 3: A(f"{tag}_A{q}:")
        A(f"s_branch {tag}_J{half}")
    for q in range(8):
        flush_block(tag, par, q, slow)

def epi_loads():
    A(f"v_mbcnt_lo_u32_b32 v{TN}, -1, 0")
    A(f"v_mbcnt_hi_u32_b32 v{TN}, -1, v{TN}")
    A(f"v_lshrrev_b32 v{TN+1}, 1, v{TN}")
    A(f"v_and_b32 v{TN}, 1, v{TN}")
    A(f"v_lshlrev_b32 v{TN}, 4, v{TN}")
    A(f"v_lshl_add_u32 v{TN}, v{TN+1}, 7, v{TN}")
    for j in range(4):
        A(f"s_mov_b32 m0, s{SM0+j}")
        A(f"s_add_u32 s{ST0}, s{SCT32}, {4096*j}")
        A(f"buffer_load_dwordx4 v{TN}, {s(SWU,4)}, s{ST0} offen lds")

def next_reads(tag, par):
    A("s_waitcnt lgkmcnt(0)")
    A(f"s_cmp_lt_u32 s{SLEFT}, 2")
    A(f"s_cbranch_scc1 {tag}_nr")
    A(f"s_add_u32 s{SQ2}, s{STQ}, 16")
    addr_calc(wait=False)
    aux_reads(2 + par)
    a_reads()
    idx_reads(3 + par)
    A(f"{tag}_nr:")

def tile_tail(md, par):
    if par == 1:
        A(f"v_add_u32 v{VREC}, 512, v{VREC}")
        A(f"v_add_u32 v{VSRC}, 512, v{VSRC}")
    A(f"s_add_u32 s{STQ}, s{STQ}, 8")
    A(f"s_sub_u32 s{SREL}, s{SREL}, 8")
    A(f"s_sub_u32 s{SLEFT}, s{SLEFT}, 1")
    A(f"s_cmp_eq_u32 s{SLEFT}, 0")
    A(f"s_cbranch_scc1 {md}L{par^1}")

def tile_body(md, par, kind):
    slow = md == "S"
    tag = f"{md}{kind}{par}"
    A(f"{tag}:")
    if kind == "L":
        A("s_setprio 0")
        A("s_waitcnt lgkmcnt(0)")
        epi_loads()
        xphase(par, 0, [])
        pphase(tag, par, 0, slow)
        xphase(par, 1, [])
        pphase(tag, par, 1, slow)
        if par == 0: A(f"s_branch {md}_fin")
    elif kind == "M":
        A(f"s_cmp_lt_u32 s{SLEFT}, 3")
        A(f"s_cbranch_scc1 {tag}_lo")
        A(f"{tag}_g:")
        A("s_waitcnt lgkmcnt(0)")
        gather()
        A(f"{tag}_ng:")
        xphase(par, 0, m_ops(par ^ 1, 0))
        pphase(tag, par, 0, slow)
        rec_early(2 + par)
        xphase(par, 1, m_ops(par ^ 1, 1))
        next_reads(tag, par)
        pphase(tag, par, 1, slow)
        tile_tail(md, par)
        if par == 1: A(f"s_branch {md}M0")
    else:
        xphase(par, 0, [])
        a_reads()
        idx_reads(2)
        pphase(tag, par, 0, slow)
        A("s_waitcnt lgkmcnt(0)")
        A(f"s_cmp_lt_u32 s{SLEFT}, 2")
        A(f"s_cbranch_scc1 {tag}_ng")
        gather()
        A(f"{tag}_ng:")
        rec_early(2)
        xphase(par, 1, m_ops(1, 0) + m_ops(1, 1), gap=3 if True else 2)
        next_reads(tag, par)
        pphase(tag, par, 1, slow)
        tile_tail(md, par)
        A(f"s_branch {md}M1")

def main_loop(md):
    slow = md == "S"
    tile_body(md, 0, "E")
    tile_body(md, 0, "M")
    tile_body(md, 1, "M")
    tile_body(md, 0, "L")
    tile_body(md, 1, "L")
    A(f"{md}_fin:")
    flush_core(slow)
    A("s_branch K2_join")
    for kind, par in (("M", 0), ("M", 1), ("E", 0), ("L", 0), ("L", 1)):
        checked_blocks(f"{md}{kind}{par}", par, slow)

def id_tables():
    A(f"s_sub_u32 s{ST0}, s{SW}, 12")
    A(f"s_cmp_lt_u32 s{ST0}, 2")
    A("s_cbranch_scc0 K2_ctdone")
    A(f"s_lshl_b32 s{ST1}, s{ST0}, 4")
    A("v_lshlrev_b32 v12, 3, v11")
    A("v_sub_u32 v12, v10, v12")
    A(f"v_subrev_u32 v12, s{ST1}, v12")
    A("v_mov_b32 v13, 0x3f80")
    A("v_mov_b32 v14, 0x3f800000")
    for jj in range(4):
        A(f"v_cmp_eq_u32 vcc, {2*jj}, v12")
        A(f"v_cmp_eq_u32 {s(SC1,2)}, {2*jj+1}, v12")
        A("s_nop 0")
        A(f"v_cndmask_b32 v{16+jj}, 0, v13, vcc")
        A(f"v_cndmask_b32 v{16+jj}, v{16+jj}, v14, {s(SC1,2)}")
    A(f"s_lshl_b32 s{ST0}, s{ST0}, 10")
    A(f"v_add_u32 v12, s{ST0}, v9")
    A(f"ds_write_b128 v12, v[16:19] offset:{CTAB}")
    A("K2_ctdone:")

def w3_table():
    A(f"s_cmp_eq_u32 s{SW}, 15")
    A("s_cbranch_scc0 K2_w3done")
    A("v_lshlrev_b32 v12, 1, v10")
    A(f"v_add_u32 v12, {W2L + 8192}, v12")
    A("ds_read_u16 v20, v12")
    A("ds_read_u16 v21, v12 offset:64")
    A("v_cmp_lt_u32 vcc, 31, v1")
    A("v_lshlrev_b32 v14, 3, v1")
    A("s_waitcnt lgkmcnt(0)")
    for r in (20, 21):
        A(f"v_lshlrev_b32 v{r}, 16, v{r}")
        A(f"v_mul_f32 v{r}, s{ST2}, v{r}")
        A(f"v_and_b32 v12, 0xffff0000, v{r}")
        A(f"v_sub_f32 v13, v{r}, v12")
        A("v_cndmask_b32 v12, v12, v13, vcc")
        A(f"v_cvt_pk_bf16_f32 v{r}, 0, v12")
    A(f"ds_write_b64 v14, v[20:21] offset:{CTAB + 2048}")
    A("K2_w3done:")

def gen_k2():
    kernel_head("mpnn_main_kernel")
    A("s_cmp_ge_u32 s2, 256")
    A("s_cbranch_scc1 K2_done")
    stamp()
    A(f"s_load_dwordx2 {s(SWS,2)}, s[0:1], 64")
    A(f"s_load_dwordx2 {s(SXR,2)}, s[0:1], 0")
    A(f"s_load_dwordx4 {s(SWM,4)}, s[0:1], 32")
    A(f"s_load_dwordx2 {s(SOUT,2)}, s[0:1], 48")
    A("s_setprio 3")
    A("v_lshrrev_b32 v1, 6, v0")
    A(f"s_and_b32 s{SB}, s2, 7")
    A(f"v_readfirstlane_b32 s{SW}, v1")
    A(f"s_lshl_b32 s{SB}, s{SB}, 5")
    A("s_lshr_b32 s3, s2, 3")
    A(f"s_or_b32 s{SB}, s{SB}, s3")
    A(f"s_lshl_b32 s{SOFA}, s{SB}, 2")
    A(f"s_add_u32 s{SOFA}, s{SOFA}, {OFFS:#x}")
    A(f"s_mov_b32 s{SMODE}, 0")
    A(f"s_mov_b32 s{S64}, 64")
    A(f"s_mov_b32 s{SQS}, {QS}")
    A(f"s_mov_b32 s{SW2L}, {W2L}")
    A(f"s_mov_b32 s{SN49}, -1")
    A(f"s_mov_b32 s{SN49+1}, 0x1ffff")
    A(f"s_lshl_b32 s{ST0}, s{SW}, 12")
    A(f"s_add_u32 s{SM0}, s{ST0}, {STAGE}")
    for j in range(1, 4):
        A(f"s_add_u32 s{SM0+j}, s{SM0}, {1024*j}")
    A(f"s_and_b32 s{SCT32}, s{SW}, 3")
    A(f"s_lshl_b32 s{SCT32}, s{SCT32}, 5")
    A(f"s_and_b32 s{SNT}, s{SW}, 12")
    A(f"s_lshl_b32 s{SNT}, s{SNT}, 2")
    A("s_waitcnt lgkmcnt(0)")
    A(f"s_mov_b32 s{SPT}, s{SWS}")
    A(f"s_and_b32 s{SWS+1}, s{SWS+1}, 0xffff")
    A(f"s_mov_b32 s{SWS+2}, {WSZ:#x}")
    A(f"s_mov_b32 s{SWS+3}, 0x20000")
    A("v_and_b32 v2, 0x3fc, v0")
    A("v_lshlrev_b32 v2, 8, v2")
    A(f"buffer_load_dword v5, v2, {s(SWS,4)}, s{SOFA} offen")
    A(f"s_or_b32 s{SPT+1}, s{SWS+1}, {128<<16:#x}")
    A(f"s_mov_b32 s{SPT+2}, {N}")
    A(f"s_mov_b32 s{SPT+3}, 0x20000")
    A(f"s_and_b32 s{SXR+1}, s{SXR+1}, 0xffff")
    A(f"s_or_b32 s{SXR+1}, s{SXR+1}, {128<<16:#x}")
    A(f"s_mov_b32 s{SXR+2}, {N}")
    A(f"s_mov_b32 s{SXR+3}, 0x20000")
    srd(SWU, SWM+2, SWM+3, 128*128)
    srd(SWM, SWM, SWM+1, 129*128)
    srd(SOUT, SOUT, SOUT+1, N*128)
    A(f"s_mov_b32 s{SWIN}, {WIN}")
    A(f"s_mov_b32 s{SROFF}, 0")
    A("s_branch K2_first")
    A("K2_restart:")
    A(f"s_mov_b32 s{SWIN}, {WIN}")
    A(f"s_mov_b32 s{SROFF}, 0")
    A("K2_round:")
    A("v_and_b32 v2, 0x3fc, v0")
    A("v_lshlrev_b32 v2, 8, v2")
    A(f"buffer_load_dword v5, v2, {s(SWS,4)}, s{SOFA} offen")
    A("K2_first:")
    A("v_and_b32 v1, 63, v0")
    A("v_lshlrev_b32 v9, 4, v1")
    A(f"s_cmp_lt_u32 s{SW}, 8")
    A("s_cbranch_scc0 K2_nox")
    A("v_lshrrev_b32 v6, 3, v1")
    A(f"s_lshl_b32 s{ST0}, s{SW}, 11")
    A(f"s_add_u32 s{ST0}, s{ST0}, s{SB}")
    A("v_xor_b32 v7, v6, v1")
    A(f"v_lshl_add_u32 v6, v6, 8, s{ST0}")
    A("v_and_b32 v7, 7, v7")
    A("v_lshlrev_b32 v7, 4, v7")
    A(f"s_lshl_b32 s{ST0}, s{SW}, 10")
    A(f"s_add_u32 m0, s{ST0}, {XR}")
    A(f"s_cmp_eq_u32 s{SW}, 0")
    A(f"buffer_load_dwordx4 v[6:7], {s(SXR,4)}, 0 idxen offen lds")
    A("s_cbranch_scc0 K2_xdone")
    A(f"s_mov_b32 m0, {W2L + 8192}")
    A(f"s_mov_b32 s{ST0}, {128*128}")
    A(f"buffer_load_dwordx4 v9, {s(SWM,4)}, s{ST0} offen lds")
    A("s_branch K2_xdone")
    A("K2_nox:")
    A(f"s_lshl_b32 s{ST0}, s{SW}, 10")
    A(f"s_add_u32 m0, s{ST0}, {W2L - 8192}")
    A(f"s_and_b32 s{ST1}, s{SW}, 1")
    A(f"s_lshl_b32 s{ST1}, s{ST1}, 6")
    A("v_and_b32 v6, 16, v1")
    A("v_lshlrev_b32 v6, 1, v6")
    A("v_xor_b32 v6, v6, v9")
    A(f"v_xor_b32 v6, s{ST1}, v6")
    A(f"buffer_load_dwordx4 v6, {s(SWM,4)}, s{ST0} offen lds")
    A("K2_xdone:")
    A("v_lshrrev_b32 v4, 2, v0")
    A(f"v_mul_u32_u24 v4, {ENTS}, v4")
    A("v_and_b32 v3, 3, v0")
    A("v_lshl_add_u32 v4, v3, 4, v4")
    A("v_lshlrev_b32 v3, 1, v3")
    A(f"s_lshl_b32 s{SENA}, s{SROFF}, 3")
    A(f"s_add_u32 s{SENA}, s{SENA}, {ENT:#x}")
    A("s_setprio 0")
    for i in range(4):
        A(f"v_mov_b32 v{16+i}, 0")
    A("v_lshlrev_b32 v8, 4, v0")
    A(f"s_cmp_lt_u32 s{SW}, 3")
    A("s_cbranch_scc0 K2_nosel")
    A(f"v_cmp_gt_u32 vcc, {(FLAGS + 16 - SEL)//16}, v0")
    A("s_and_saveexec_b64 s[32:33], vcc")
    A(f"ds_write_b128 v8, v[16:19] offset:{SEL}")
    A("s_mov_b64 exec, s[32:33]")
    A(f"s_cmp_eq_u32 s{SW}, 0")
    A("s_cbranch_scc0 K2_nosel")
    A("v_cmp_lt_u32 vcc, 2, v1")
    A("v_mul_u32_u24 v20, 36, v1")
    A("v_mov_b32 v21, 0x3f803f80")
    A("v_addc_co_u32 v22, vcc, 0, v16, vcc")
    A("v_lshl_add_u32 v20, v22, 2, v20")
    A("s_mov_b64 exec, 63")
    A(f"ds_write_b32 v20, v21 offset:{SEL}")
    A("s_mov_b64 exec, -1")
    A("K2_nosel:")
    A(f"s_cmp_lg_u32 s{SROFF}, 0")
    A("s_cbranch_scc1 K2_noagg")
    A(f"v_add_u32 v20, {AGG}, v8")
    A("ds_write_b128 v20, v[16:19]")
    A(f"v_cmp_gt_u32 vcc, {(50*AGS - 16384 + 15)//16}, v0")
    A("s_and_saveexec_b64 s[32:33], vcc")
    A("ds_write_b128 v20, v[16:19] offset:16384")
    A(f"ds_write_b32 v16, v16 offset:{FLAGS + 16}")
    A("s_mov_b64 exec, s[32:33]")
    A("K2_noagg:")
    A("v_and_b32 v10, 31, v1")
    A("v_lshrrev_b32 v11, 5, v1")
    A("s_setprio 3")
    A(f"s_cmp_eq_u32 s{SW}, 0")
    A("s_cbranch_scc1 K2_w0")
    A("s_waitcnt vmcnt(1)")
    A("K2_w0:")
    A("s_waitcnt vmcnt(2)")
    stamp()
    A("v_lshrrev_b32 v20, 16, v5")
    A(f"v_subrev_u32 v20, s{SROFF}, v20")
    A(f"v_min_i32 v21, s{SWIN}, v20")
    A("v_sub_u32 v21, v21, v3")
    A("v_and_b32 v5, 0xffff, v5")
    A("v_lshl_add_u32 v5, v5, 3, v4")
    for i in range(4):
        A(f"v_cmp_lt_i32 {s(SMASK+4*i,2)}, {8*i}, v21")
    for i in range(4):
        A(f"s_mov_b64 exec, {s(SMASK+4*i,2)}")
        A(f"buffer_load_dwordx4 v[{24+4*i}:{27+4*i}], v5, {s(SWS,4)}, s{SENA} offen offset:{64*i}")
    A("s_mov_b64 exec, -1")
    A("s_setprio 0")
    A(f"s_and_b32 s{ST0}, s{SB}, 31")
    A(f"s_mul_i32 s{ST0}, s{ST0}, {391*128}")
    A("v_lshlrev_b32 v23, 6, v0" if "nopf" not in EXP else "v_mov_b32 v23, 0")
    A(f"buffer_load_dword v2, v23, {s(SWS,4)}, s{ST0} offen")
    for i in range(4):
        A(f"v_cmp_lt_i32 {s(SMASK+4*i+2,2)}, {8*i+1}, v21")
    A(f"v_cmp_lt_i32 {s(SC0,2)}, s{SWIN}, v20")
    id_tables()
    A("v_and_b32 v12, 15, v1")
    A("v_and_b32 v13, 48, v1")
    A(f"v_add_u32 v14, s{SNT}, v12")
    A("v_lshlrev_b32 v15, 4, v12")
    A("v_and_b32 v15, 0x70, v15")
    A("v_xor_b32 v15, v15, v13")
    A("v_lshl_add_u32 v6, v14, 7, v15")
    A("v_xor_b32 v3, 64, v6")
    A(f"v_mad_u32_u24 v7, v14, s{SQS}, v13")
    A(f"s_lshl_b32 s{ST0}, s{SCT32}, 1")
    A(f"v_add_u32 v7, s{ST0}, v7")
    A("v_lshrrev_b32 v14, 1, v13")
    A("v_bfe_u32 v15, v1, 2, 2")
    A("v_add_lshl_u32 v14, v14, v15, 7")
    A("v_and_b32 v15, 3, v1")
    A("v_lshl_add_u32 v14, v15, 3, v14")
    A("v_and_b32 v15, 24, v1")
    A("v_lshlrev_b32 v15, 2, v15")
    A(f"v_xor_b32 v15, s{SCT32}, v15")
    A(f"v_add3_u32 v8, v14, v15, s{SW2L}")
    A(f"s_mov_b32 s{ST2}, {NLOG2E:#x}")
    stamp()
    A("s_waitcnt vmcnt(5) lgkmcnt(0)")
    stamp()
    A("s_barrier")
    stamp()
    A(f"ds_read_b128 v[64:67], v6 offset:{XR}")
    A(f"ds_read_b128 v[68:71], v3 offset:{XR}")
    for ks in range(2):
        for u in range(2):
            r = 72 + 4*ks + 2*u
            A(f"ds_read_b64_tr_b16 v[{r}:{r+1}], v8 offset:{4096*ks + 512*u}")
    w3_table()
    A("s_waitcnt lgkmcnt(0)")
    A("v_mfma_f32_16x16x32_bf16 v[16:19], v[72:75], v[64:67], 0")
    A("v_mfma_f32_16x16x32_bf16 v[16:19], v[76:79], v[68:71], v[16:19]")
    A("v_mov_b32 v22, 1")
    A("s_nop 6")
    for r in range(4):
        A(f"v_mul_f32 v{16+r}, s{ST2}, v{16+r}")
        A(f"v_and_b32 v23, 0xffff0000, v{16+r}")
        A(f"v_sub_f32 v{16+r}, v{16+r}, v23")
        A(f"v_cvt_pk_bf16_f32 v{16+r}, v{16+r}, v23")
    A(f"ds_write_b128 v7, v[16:19] offset:{QT}")
    A("s_setprio 3")
    for i in range(4):
        if i >= 2:
            A(f"s_cmp_eq_u64 {s(SMASK+4*i,2)}, 0")
            A("s_cbranch_scc1 K2_atdone")
        A(f"s_waitcnt vmcnt({4-i})")
        if i == 1: stamp()
        for f in range(2):
            A(f"v_bfe_u32 v{40+2*i+f}, v{24+4*i+2*f}, 3, 13")
        for f in range(2):
            k = 2*i + f
            A(f"s_mov_b64 exec, {s(SMASK+2*k,2)}")
            A(f"ds_add_rtn_u32 v{48+k}, v{40+k}, v22 offset:{CNT}")
        A("s_mov_b64 exec, -1")
    A("K2_atdone:")
    A(f"s_cmp_eq_u64 {s(SC0,2)}, 0")
    A("s_cbranch_scc1 K2_nomore")
    A(f"v_mov_b32 v13, {FLAGS}")
    A("ds_write_b32 v13, v22")
    A("K2_nomore:")
    A("s_setprio 0")
    A("v_bfe_u32 v12, v1, 2, 2")
    A("v_xor_b32 v12, v12, v11")
    A("v_lshlrev_b32 v12, 4, v12")
    A("v_lshl_add_u32 v12, v10, 6, v12")
    A(f"v_add_u32 v{VAA[0]}, s{SM0}, v12")
    A(f"v_xor_b32 v{VAA[1]}, 32, v{VAA[0]}")
    def swap12x8(dst, src):
        A(f"v_and_b32 v12, 2, v{src}")
        A(f"v_and_b32 v13, 4, v{src}")
        A(f"v_and_b32 v{dst}, 0x19, v{src}")
        A(f"v_lshlrev_b32 v{dst}, 3, v{dst}")
        A(f"v_lshl_or_b32 v{dst}, v12, 4, v{dst}")
        A(f"v_lshl_or_b32 v{dst}, v13, 2, v{dst}")
    swap12x8(VREC, 10)
    A("v_lshrrev_b32 v14, 2, v1")
    swap12x8(VSRC, 14)
    A("v_lshrrev_b32 v12, 4, v1")
    A("v_xor_b32 v12, v12, v1")
    A("v_and_b32 v12, 3, v12")
    A(f"v_lshlrev_b32 v{GI[0]+1}, 4, v12")
    A(f"v_lshlrev_b32 v{GI[1]+1}, 4, v12")
    A("v_lshlrev_b32 v12, 2, v1")
    A(f"v_mov_b32 v20, {PADLO}")
    A("v_mov_b32 v21, 0xffff")
    A("s_setprio 3")
    A("s_waitcnt lgkmcnt(0)")
    A("s_barrier")
    stamp()
    A(f"ds_read_b32 v13, v12 offset:{CNT}")
    A("s_waitcnt lgkmcnt(0)")
    A("v_add_u32 v14, 3, v13")
    A("v_and_b32 v14, -4, v14")
    A("v_max_u32 v14, 8, v14")
    A(f"v_cndmask_b32 v14, 0, v14, {s(SN49,2)}")
    A("v_lshlrev_b32 v15, 3, v14")
    scan(15)
    A("v_lshlrev_b32 v17, 3, v14")
    A(f"v_readlane_b32 s{ST0}, v15, 63")
    A("v_sub_u32 v15, v15, v17")
    for k in range(4):
        A(f"ds_bpermute_b32 v{56+k}, v{40+k}, v15")
    A(f"s_cmp_gt_u32 s{ST0}, {(CAPS-32)*8}")
    A("s_cbranch_scc1 K2_big")
    A(f"s_cmp_eq_u64 {s(SMASK+8,2)}, 0")
    A("s_cbranch_scc1 K2_bp2")
    for k in range(4, 6):
        A(f"ds_bpermute_b32 v{56+k}, v{40+k}, v15")
    A(f"s_cmp_eq_u64 {s(SMASK+12,2)}, 0")
    A("s_cbranch_scc1 K2_bp2")
    for k in range(6, 8):
        A(f"ds_bpermute_b32 v{56+k}, v{40+k}, v15")
    A("K2_bp2:")
    A(f"s_add_u32 s{ST1}, s{ST0}, 255")
    A(f"s_cmp_gt_u32 s{SW}, 8")
    A("s_cbranch_scc1 K2_nopad")
    A(f"v_add_u32 v16, s{SW}, v13")
    A("v_cmp_lt_u32 vcc, v16, v14")
    A("v_lshl_add_u32 v16, v16, 3, v15")
    A(f"s_cmp_eq_u32 s{SW}, 8")
    A("s_cbranch_scc0 K2_notail")
    A(f"v_lshl_add_u32 v16, v1, 3, s{ST0}")
    A(f"s_and_b32 s{SQ2}, s{ST1}, -256")
    A(f"v_cmp_gt_u32 vcc, s{SQ2}, v16")
    A("K2_notail:")
    A("s_mov_b64 exec, vcc")
    A("ds_write_b64 v16, v[20:21]")
    A("s_mov_b64 exec, -1")
    A("K2_nopad:")
    A(f"s_lshr_b32 s{ST1}, s{ST1}, 8")
    A(f"s_lshr_b32 s{SLEFT}, s{ST1}, 4")
    A(f"s_and_b32 s{ST1}, s{ST1}, 15")
    A(f"s_mul_i32 s{STQ}, s{SLEFT}, s{SW}")
    A(f"s_min_u32 s{ST0}, s{SW}, s{ST1}")
    A(f"s_add_u32 s{STQ}, s{STQ}, s{ST0}")
    A(f"s_cmp_lt_u32 s{SW}, s{ST1}")
    A(f"s_addc_u32 s{SLEFT}, s{SLEFT}, 0")
    A(f"s_lshl_b32 s{ST0}, s{STQ}, 8")
    A(f"s_add_u32 s{ST1}, s{ST0}, 4")
    A(f"v_add_u32 v{VREC}, s{ST0}, v{VREC}")
    A(f"v_add_u32 v{VSRC}, s{ST1}, v{VSRC}")
    A(f"s_lshl_b32 s{STQ}, s{STQ}, 3")
    A("s_waitcnt lgkmcnt(0)")
    for i in range(4):
        if i >= 2:
            A(f"s_cmp_eq_u64 {s(SMASK+4*i,2)}, 0")
            A("s_cbranch_scc1 K2_scdone")
        for f in range(2):
            k = 2*i + f
            A(f"v_lshl_add_u32 v{56+k}, v{48+k}, 3, v{56+k}")
        for f in range(2):
            k = 2*i + f
            A(f"s_mov_b64 exec, {s(SMASK+2*k,2)}")
            A(f"ds_write_b64 v{56+k}, v[{24+2*k}:{25+2*k}]")
        A("s_mov_b64 exec, -1")
    A("K2_scdone:")
    for tt in range(2):
        for o in range(2):
            A(f"v_mov_b32 v{NUM[tt]+o}, 0")
            A(f"v_mov_b32 v{DEN[tt]+o}, 1.0")
    A(f"v_mov_b32 v{CHK}, 0")
    A(f"v_mov_b32 v{CHK+1}, 0")
    A(f"v_lshrrev_b32 v{VSQ}, 5, v15")
    A(f"v_mov_b32 v12, {SEL + 32}")
    A(f"v_lshl_add_u32 v{VSELC}, v11, 4, v12")
    A(f"v_mul_u32_u24 v13, {3*QS}, v11")
    A(f"v_lshl_add_u32 v{VB3C}, v10, 2, v13")
    A(f"v_add_u32 v{VB3C}, {QT - QS}, v{VB3C}")
    A("s_waitcnt lgkmcnt(0)")
    A("s_barrier")
    stamp()
    A(f"s_cmp_eq_u32 s{SLEFT}, 0")
    A("s_cbranch_scc1 K2_notiles")
    idx_reads(0)
    rec_early(0)
    A("s_waitcnt lgkmcnt(1)")
    gather()
    idx_reads(1)
    A(f"ds_read_b128 {v(ID[0],4)}, v9 offset:{CTAB}")
    A(f"ds_read_b128 {v(ID[1],4)}, v9 offset:{CTAB+1024}")
    A("v_lshlrev_b32 v12, 3, v1")
    A(f"ds_read_b32 v{B3[0]+3}, v12 offset:{CTAB+2048}")
    A(f"ds_read_b32 v{B3[1]+3}, v12 offset:{CTAB+2052}")
    A(f"v_cmp_ge_u32 vcc, s{STQ}, v{VSQ}")
    A(f"s_bcnt1_i32_b64 s{SNP1}, vcc")
    A(f"s_mul_i32 s{ST0}, s{SNP1}, {AGS}")
    A(f"s_add_u32 s{ST0}, s{ST0}, {AGG - AGS}")
    A(f"v_lshl_add_u32 v{VAGG}, v10, 3, s{ST0}")
    A(f"v_readlane_b32 s{ST2}, v{VSQ}, s{SNP1}")
    A(f"s_sub_u32 s{SREL}, s{ST2}, s{STQ}")
    A(f"s_sub_u32 s{SLEFT}, s{SLEFT}, 1")
    A(f"s_mov_b32 s{SQ2}, s{STQ}")
    addr_calc()
    aux_reads(0)
    a_reads()
    stamp()
    rec_early(1)
    A("s_waitcnt lgkmcnt(1)")
    for t in range(2):
        for m in m_ops(0, t):
            m()
    stamp()
    A(f"s_cmp_eq_u32 s{SLEFT}, 0")
    A("s_cbranch_scc1 K2_pre2")
    gather()
    A(f"s_add_u32 s{SQ2}, s{STQ}, 8")
    addr_calc()
    aux_reads(1)
    A(f"s_cmp_eq_u32 s{SMODE}, 0")
    A("s_cbranch_scc0 SE0")
    main_loop("F")
    A("K2_pre2:")
    A("s_nop 15")
    A(f"s_cmp_eq_u32 s{SMODE}, 0")
    A("s_cbranch_scc1 FL0")
    A("s_branch SL0")
    A("K2_notiles:")
    A("s_waitcnt vmcnt(0)")
    epi_loads()
    A("K2_join:")
    stamp()
    A(f"v_add_f32 v{CHK}, v{CHK}, v{CHK+1}")
    A("v_mov_b32 v0, 0x207")
    A(f"v_cmp_class_f32 vcc, v{CHK}, v0")
    A("s_branch K2_ok" if EXP - {"nopf","k1sc1","k1nt","k1sc01","noprio","invprio"} else "s_cbranch_vccz K2_ok")
    A(f"v_mov_b32 v0, {FLAGS + 16}")
    A("v_mov_b32 v1, 1")
    A("ds_write_b32 v0, v1")
    A("K2_ok:")
    A("v_mbcnt_lo_u32_b32 v1, -1, 0")
    A("v_mbcnt_hi_u32_b32 v1, -1, v1")
    A("v_and_b32 v2, 15, v1")
    A("v_lshrrev_b32 v3, 4, v1")
    A(f"v_add_u32 v7, s{SNT}, v2")
    A("v_and_b32 v8, 7, v1")
    A("v_xor_b32 v8, v8, v3")
    A("v_lshlrev_b32 v8, 4, v8")
    A("v_lshl_add_u32 v8, v7, 7, v8")
    A("v_xor_b32 v9, 64, v8")
    A(f"ds_read_b128 v[64:67], v8 offset:{XR}")
    A(f"ds_read_b128 v[68:71], v9 offset:{XR}")
    A(f"s_lshl_b32 s{ST0}, s{SW}, 2")
    A(f"v_add_u32 v9, s{ST0}, v3")
    A(f"v_mul_u32_u24 v4, {AGS}, v9")
    A("v_lshl_add_u32 v4, v2, 5, v4")
    A(f"v_add_u32 v4, {AGG}, v4")
    A(f"v_mul_u32_u24 v10, {ABS}, v9")
    A("v_lshl_add_u32 v10, v2, 3, v10")
    A(f"v_add_u32 v10, {STAGE}, v10")
    A(f"v_mul_u32_u24 v11, {ABS}, v7")
    A("v_lshl_add_u32 v11, v3, 4, v11")
    A(f"v_add_u32 v11, {STAGE}, v11")
    A(f"s_lshl_b32 s{ST0}, s{SB}, 7")
    A(f"s_and_b32 s{ST1}, s{SW}, 3")
    A(f"s_lshl_b32 s{ST1}, s{ST1}, 5")
    A(f"s_add_u32 s{ST0}, s{ST0}, s{ST1}")
    A("v_lshlrev_b32 v5, 15, v7")
    A("v_lshl_add_u32 v5, v3, 3, v5")
    A(f"v_add_u32 v5, s{ST0}, v5")
    A(f"v_mov_b32 v6, {FLAGS}")
    A("v_lshrrev_b32 v12, 2, v2")
    A("v_lshl_add_u32 v12, v3, 3, v12")
    A("v_and_b32 v13, 3, v1")
    A("v_lshlrev_b32 v13, 3, v13")
    A("v_lshl_add_u32 v12, v12, 5, v13")
    A(f"v_add_u32 v12, s{SM0}, v12")
    A("s_waitcnt vmcnt(0)")
    for f in range(8):
        A(f"ds_read_b64_tr_b16 v[{72+2*f}:{73+2*f}], v12 offset:{1024*(f>>1) + 128*(f&1)}")
    A(f"s_mov_b32 s{SC0}, {NLN2:#x}")
    A(f"s_mov_b32 s{SC0+1}, {NLN2:#x}")
    A("s_waitcnt lgkmcnt(0)")
    A("v_mfma_f32_16x16x32_bf16 v[32:35], v[72:75], v[64:67], 0")
    A("v_mfma_f32_16x16x32_bf16 v[32:35], v[76:79], v[68:71], v[32:35]")
    A("s_barrier")
    stamp()
    A("ds_read_b128 v[12:15], v4")
    A("ds_read_b128 v[16:19], v4 offset:16")
    A("ds_read2_b32 v[8:9], v6 offset0:0 offset1:4")
    A("s_waitcnt lgkmcnt(2)")
    A("v_cvt_f32_f64 v20, v[12:13]")
    A("v_cvt_f32_f64 v21, v[14:15]")
    A("s_waitcnt lgkmcnt(1)")
    A("v_cvt_f32_f64 v22, v[16:17]")
    A("v_cvt_f32_f64 v23, v[18:19]")
    A(f"v_pk_mul_f32 v[20:21], v[20:21], {s(SC0,2)}")
    A(f"v_pk_mul_f32 v[22:23], v[22:23], {s(SC0,2)}")
    A("v_cvt_pk_bf16_f32 v20, v20, v21")
    A("v_cvt_pk_bf16_f32 v21, v22, v23")
    A("ds_write_b64 v10, v[20:21]")
    A("s_waitcnt lgkmcnt(1)")
    A(f"v_readfirstlane_b32 s{ST0}, v8")
    A(f"v_readfirstlane_b32 s{ST1}, v9")
    A(f"s_andn2_b32 s{ST1}, s{ST1}, s{SMODE}")
    A(f"s_or_b32 s{SQ2}, s{ST0}, s{ST1}")
    A("s_cbranch_scc1 K2_rare")
    A(f"s_mov_b32 s{SC0}, {NLOG2E:#x}")
    A(f"s_mov_b32 s{SC0+1}, {NLOG2E:#x}")
    A("s_waitcnt lgkmcnt(0)")
    A("s_barrier")
    A("ds_read_b128 v[36:39], v11")
    A("ds_read_b128 v[40:43], v11 offset:64")
    A("s_waitcnt lgkmcnt(1)")
    A("v_mfma_f32_16x16x32_bf16 v[32:35], v[80:83], v[36:39], v[32:35]")
    A("s_waitcnt lgkmcnt(0)")
    A("v_mfma_f32_16x16x32_bf16 v[32:35], v[84:87], v[40:43], v[32:35]")
    A("s_nop 7")
    A("v_cvt_pk_bf16_f32 v12, v32, v33")
    A("v_cvt_pk_bf16_f32 v13, v34, v35")
    A("v_lshlrev_b32 v16, 16, v12")
    A("v_and_b32 v17, 0xffff0000, v12")
    A("v_lshlrev_b32 v18, 16, v13")
    A("v_and_b32 v19, 0xffff0000, v13")
    A(f"v_pk_mul_f32 v[20:21], v[16:17], {s(SC0,2)}")
    A(f"v_pk_mul_f32 v[22:23], v[18:19], {s(SC0,2)}")
    for i in range(4):
        A(f"v_exp_f32 v{20+i}, v{20+i}")
    A("v_pk_add_f32 v[20:21], v[20:21], 1.0 op_sel_hi:[1,0]")
    A("v_pk_add_f32 v[22:23], v[22:23], 1.0 op_sel_hi:[1,0]")
    for i in range(4):
        A(f"v_rcp_f32 v{20+i}, v{20+i}")
    A("v_pk_mul_f32 v[20:21], v[16:17], v[20:21]")
    A("v_pk_mul_f32 v[22:23], v[18:19], v[22:23]")
    A("v_cvt_pk_bf16_f32 v12, v20, v21")
    A("v_cvt_pk_bf16_f32 v13, v22, v23")
    A(f"buffer_store_dwordx2 v[12:13], v5, {s(SOUT,4)}, 0 offen")
    if PROF:
        stamp()
        A("s_waitcnt lgkmcnt(0)")
        n = NST[0]
        for i in range(n):
            A(f"v_mov_b32 v{20+i}, s{76+2*i}")
        A(f"s_lshl_b32 s{ST0}, s{SB}, 4")
        A(f"s_add_u32 s{ST0}, s{ST0}, s{SW}")
        A(f"s_lshl_b32 s{ST0}, s{ST0}, 6")
        A(f"s_add_u32 s{ST0}, s{ST0}, 0x880000")
        A(f"v_mov_b32 v19, s{ST0}")
        A("s_mov_b64 exec, 1")
        for i in range(0, 16, 4):
            A(f"buffer_store_dwordx4 v[{20+i}:{23+i}], v19, {s(SWS,4)}, 0 offen offset:{4*i}")
    A("K2_done:")
    A("s_endpgm")
    A("K2_big:")
    A(f"s_mov_b32 s{SWIN}, 16")
    A(f"s_mov_b32 s{ST0}, 0")
    A(f"s_mov_b32 s{ST1}, 0")
    A("s_branch K2_again")
    A("K2_rare:")
    A(f"s_mov_b32 s{ST0}, s{SWIN}")
    A("K2_again:")
    A("s_waitcnt vmcnt(0) lgkmcnt(0)")
    A("s_barrier")
    A("v_mbcnt_lo_u32_b32 v1, -1, 0")
    A("v_mbcnt_hi_u32_b32 v1, -1, v1")
    A(f"s_lshl_b32 s{ST2}, s{SW}, 6")
    A(f"v_add_u32 v0, s{ST2}, v1")
    A(f"s_add_u32 s{SROFF}, s{SROFF}, s{ST0}")
    A(f"s_cmp_lg_u32 s{ST1}, 0")
    A("s_cbranch_scc0 K2_round")
    A(f"s_mov_b32 s{SMODE}, 1")
    A("s_branch K2_restart")
    main_loop("S")

HEADER = """; MPNN edge MLP: out = silu([x, segsum_dst(silu([x_src, x_dst, e] @ w_msg))] @ w_upd)
"""

def main(path):
    A(HEADER.rstrip())
    A(f"; @launch kernel=mpnn_part_kernel grid=({K1GRID},1,1) block=(1024,1,1) lds={K1LDS}")
    A(f"; @launch kernel=mpnn_main_kernel grid=(256,1,1) block=(1024,1,1) lds={K2LDS}")
    A('.amdgcn_target "amdgcn-amd-amdhsa--gfx950"')
    A(".text")
    gen_k1()
    gen_k2()
    A('.section .rodata,"a"')
    A(".p2align 6")
    kernel_desc("mpnn_part_kernel", 112, 64 if PROF else 40)
    A(".p2align 6")
    kernel_desc("mpnn_main_kernel", 128, 102 if PROF else 76)
    open(path, "w").write("\n".join(L) + "\n")

if __name__ == "__main__":
    if len(sys.argv) > 2 and sys.argv[2] == "prof": PROF = True
    if len(sys.argv) > 3: EXP = set(sys.argv[3].split(","))
    main(sys.argv[1] if len(sys.argv) > 1 else "standalone__mpnn_edge_mlp__graph.s")
```
